```python
import torch

def _softmax(x, axis=-1):
    return torch.softmax(x, dim=axis)
def _gelu(x):
    return torch.nn.functional.gelu(x, approximate="tanh")
def _silu(x):
    return torch.nn.functional.silu(x)
def _sigmoid(x):
    return torch.sigmoid(x)
def _layernorm(x, axis=-1, eps=1e-5):
    m = x.mean(dim=axis, keepdim=True)
    v = x.var(dim=axis, keepdim=True, unbiased=False)
    return (x - m) / torch.sqrt(v + eps)
def _scatter_add(tgt, idx, src, axis=0):
    return tgt.clone().index_add_(axis, idx, src)
def _segment_sum(src, seg, n):
    out = torch.zeros((n,) + src.shape[1:], dtype=src.dtype)
    return out.index_add_(0, seg, src)
def _pad(x, pw):
    flat = tuple(v for pair in reversed(pw) for v in pair)
    return torch.nn.functional.pad(x, flat)

kernel_name = 'standalone__mpnn_edge_mlp__graph'

def setup_inputs():

    _w = (lambda a: (lambda t: t.to(torch.bfloat16) if t.is_floating_point() else t)(torch.as_tensor(a)))
    N, deg, D, De = 12500, 64, 64, max(16, 1)
    E = N * deg
    return {
        "x": _w((lambda *s: torch.randn(*s, dtype=torch.bfloat16) * 0.05)(N, D)),
        "e_attr": _w((lambda *s: torch.randn(*s, dtype=torch.bfloat16) * 0.4)(E, De)),
        "src": _w((lambda lo, hi, *s: torch.randint(lo, hi, s))(0, N, E).to(torch.int64)),
        "dst": _w((lambda lo, hi, *s: torch.randint(lo, hi, s))(0, N, E).to(torch.int64)),
        "w_msg": _w((lambda *s: torch.randn(*s, dtype=torch.bfloat16) * 0.4)(2 * D + De, D)),
        "w_upd": _w((lambda *s: torch.randn(*s, dtype=torch.bfloat16) * 0.05)(2 * D, D)),
    }

def reference(x, e_attr, src, dst, w_msg, w_upd):
    N, D = x.shape
    m_in = torch.concatenate([x[src], x[dst], e_attr], axis=-1)
    msg = _silu(m_in @ w_msg)
    agg = _segment_sum(msg, dst, N)
    return _silu(torch.concatenate([x, agg], axis=-1) @ w_upd)
```

```python
import sys
N=12500; E=800000; CH=3200; NCH=250
WS_WM=0; WS_W2=10240; WS_WU=18432; WS_TAB=65536; WS_REC=524288
WS_SIZE=WS_REC+E*4+4096

class A:
    def __init__(s): s.l=[]
    def __call__(s, txt):
        for ln in txt.strip("\n").split("\n"):
            ln=ln.strip()
            if ln: s.l.append(("" if ln.endswith(":") else "    ")+ln)
    def txt(s): return "\n".join(s.l)+"\n"

def srd(a,d,b,n):
    a(f"""s_mov_b32 s{d}, s{b}
s_and_b32 s{d+1}, s{b+1}, 0xffff
s_mov_b32 s{d+2}, {n}
s_mov_b32 s{d+3}, 0x20000""")

def scan_add(a, v):
    for sh in (1,2,4,8):
        a(f"s_nop 1\nv_add_u32_dpp v{v}, v{v}, v{v} row_shr:{sh} row_mask:0xf bank_mask:0xf bound_ctrl:0")
    a(f"s_nop 1\nv_add_u32_dpp v{v}, v{v}, v{v} row_bcast:15 row_mask:0xa bank_mask:0xf")
    a(f"s_nop 1\nv_add_u32_dpp v{v}, v{v}, v{v} row_bcast:31 row_mask:0xc bank_mask:0xf")

K1_BLOCK=832
K1_GRID=253
K1_STAGE=1024
K1_LDS=1024+CH*4
def k1(opt):
    a=A()
    a(f"""
s_cmp_ge_u32 s2, {K1_GRID}
s_cbranch_scc1 K1_END
s_load_dwordx4 s[4:7], s[0:1], 16
s_load_dwordx4 s[8:11], s[0:1], 32
s_load_dwordx2 s[12:13], s[0:1], 64
v_lshrrev_b32 v2, 6, v0
v_and_b32 v3, 63, v0
v_readfirstlane_b32 s14, v2
s_cmp_ge_u32 s2, {NCH}
s_cbranch_scc1 K1_WPREP
v_lshlrev_b32 v1, 4, v0
v_lshlrev_b32 v2, 2, v0
v_mov_b32 v20, 0
v_mov_b32 v21, 1
v_cmp_gt_u32 vcc, 256, v0
s_and_saveexec_b64 s[30:31], vcc
ds_write_b32 v2, v20
s_mov_b64 exec, s[30:31]
s_mul_i32 s3, s2, {CH*4}
v_cmp_gt_u32 vcc, {CH//4}, v0
s_waitcnt lgkmcnt(0)
""")
    srd(a,16,4,E*4); srd(a,20,6,E*4); srd(a,24,12,WS_SIZE)
    a(f"""
s_and_b64 exec, exec, vcc
buffer_load_dwordx4 v[4:7], v1, s[20:23], s3 offen nt
buffer_load_dwordx4 v[8:11], v1, s[16:19], s3 offen nt
s_barrier
s_waitcnt vmcnt(1)
""")
    for i in range(4):
        a(f"""v_lshlrev_b32 v{12+i}, 2, v{4+i}
v_and_b32 v{12+i}, 0x3fc, v{12+i}
ds_add_rtn_u32 v{16+i}, v{12+i}, v21""")
    for i in range(4):
        a(f"""v_lshrrev_b32 v{4+i}, 8, v{4+i}
v_add_u32 v22, {i}, v2
v_lshl_or_b32 v{4+i}, v{4+i}, 12, v22""")
    a("s_waitcnt vmcnt(0)")
    for i in range(4):
        a(f"v_lshl_or_b32 v{4+i}, v{8+i}, 18, v{4+i}")
    a(f"""
s_waitcnt lgkmcnt(0)
s_barrier
s_cmp_lg_u32 s14, 0
s_cbranch_scc1 K1_SKIPSCAN
ds_read_b128 v[24:27], v1
s_waitcnt lgkmcnt(0)
v_add_u32 v28, v24, v25
v_add_u32 v29, v28, v26
v_add_u32 v30, v29, v27
v_mov_b32 v31, v30
""")
    scan_add(a,31)
    a(f"""
v_sub_u32 v32, v31, v30
v_add_u32 v33, v32, v24
v_add_u32 v34, v32, v28
v_add_u32 v35, v32, v29
ds_write_b128 v1, v[32:35]
v_lshl_or_b32 v36, v24, 16, v32
v_lshl_or_b32 v37, v25, 16, v33
v_lshl_or_b32 v38, v26, 16, v34
v_lshl_or_b32 v39, v27, 16, v35
s_lshl_b32 s15, s2, 10
s_add_u32 s15, s15, {WS_TAB}
buffer_store_dwordx4 v[36:39], v1, s[24:27], s15 offen
s_waitcnt lgkmcnt(0)
K1_SKIPSCAN:
s_barrier
""")
    for i in range(4): a(f"ds_read_b32 v{24+i}, v{12+i}")
    for i in range(4):
        a(f"""s_waitcnt lgkmcnt({3-i})
v_add_lshl_u32 v{24+i}, v{24+i}, v{16+i}, 2""")
    for i in range(4):
        a(f"ds_write_b32 v{24+i}, v{4+i} offset:{K1_STAGE}")
    a(f"""
s_waitcnt lgkmcnt(0)
s_barrier
ds_read_b128 v[24:27], v1 offset:{K1_STAGE}
s_add_u32 s3, s3, {WS_REC}
s_waitcnt lgkmcnt(0)
buffer_store_dwordx4 v[24:27], v1, s[24:27], s3 offen
s_endpgm
K1_WPREP:
s_sub_u32 s15, s2, {NCH}
s_mul_i32 s15, s15, 13
s_add_u32 s15, s15, s14
s_cmp_ge_u32 s15, 34
s_cbranch_scc1 K1_END
s_waitcnt lgkmcnt(0)
""")
    srd(a,24,12,WS_SIZE)
    a(f"""
s_mov_b32 s16, s8
s_and_b32 s17, s9, 0xffff
s_mov_b32 s18, {144*128}
s_mov_b32 s19, 0x20000
s_cmp_ge_u32 s15, 10
s_cbranch_scc1 K1_W16
s_lshr_b32 s20, s15, 1
s_and_b32 s21, s15, 1
s_lshl_b32 s22, s20, 4
s_cmp_eq_u32 s20, 4
s_cselect_b32 s22, 128, s22
s_lshl_b32 s22, s22, 7
s_lshl_b32 s21, s21, 6
s_add_u32 s22, s22, s21
v_and_b32 v4, 31, v3
v_lshrrev_b32 v5, 5, v3
s_branch K1_WLOAD
K1_W16:
s_sub_u32 s20, s15, 10
s_mov_b32 s23, 64
s_cmp_ge_u32 s15, 18
s_cbranch_scc0 K1_W16B
s_sub_u32 s20, s15, 18
s_mov_b32 s23, 0
s_mov_b32 s16, s10
s_and_b32 s17, s11, 0xffff
s_mov_b32 s18, {128*128}
K1_W16B:
s_lshr_b32 s21, s20, 2
s_lshl_b32 s21, s21, 5
s_add_u32 s22, s21, s23
s_lshl_b32 s22, s22, 7
s_and_b32 s21, s20, 3
s_lshl_b32 s21, s21, 5
s_add_u32 s22, s22, s21
v_and_b32 v4, 15, v3
v_lshrrev_b32 v5, 4, v3
K1_WLOAD:
v_lshlrev_b32 v4, 1, v4
v_lshl_add_u32 v4, v5, 10, v4
""")
    for j in range(8):
        a(f"buffer_load_ushort v{8+j}, v4, s[16:19], s22 offen offset:{j*128}")
    a("v_lshlrev_b32 v6, 4, v3\ns_lshl_b32 s15, s15, 10\ns_waitcnt vmcnt(0)")
    for j in range(4):
        a(f"v_lshl_or_b32 v{16+j}, v{9+2*j}, 16, v{8+2*j}")
    a("""buffer_store_dwordx4 v[16:19], v6, s[24:27], s15 offen
K1_END:""")
    return a.txt(), 40

ROWB=768; NROW=52
CAP=4608
L_CNT=NROW*ROWB
L_MISC=L_CNT+2048
L_XO=L_MISC+512
L_EO=L_XO+CAP*4
L_STG=L_EO+CAP*4
K2_LDS=L_STG+16*4096
AGGB_STRIDE=144
XPAD=0x7fffff80
EPAD=(49<<25)|0x1ffffe0
assert L_XO%256==0 and L_EO%256==0 and L_EO//256<256

def tmap(m):
    u=(m>>4)&1; c2=(m>>3)&1; h=(m>>2)&1
    return (h<<4)|(u<<3)|(c2<<2)|(m&3)
def find_swz():
    groups=[[0,1,2,3,12,13,14,15,20,21,22,23,24,25,26,27],[4,5,6,7,8,9,10,11,16,17,18,19,28,29,30,31]]
    for mask in (4,2,6,1,3,5,7):
        ok=True
        for g in groups:
            seen=set()
            for m in g:
                t=tmap(m); e=t>>2
                bit=bin(e&mask).count("1")&1
                seen.add(((e&1),(t&3)|(bit<<2)))
            ok&=len(seen)==16
        if ok: return mask
    raise SystemExit("no swizzle")
SWZ=find_swz()

def k2(opt):
    a=A()
    WB=64; D0=32; D1=48; AX=16; VE=12; QB=104; AR=112; XO=116; EO=120; SL=122; SA=124
    a(f"""
s_cmp_ge_u32 s2, 256
s_cbranch_scc1 K2_END
s_load_dwordx4 s[4:7], s[0:1], 0
s_load_dwordx2 s[8:9], s[0:1], 48
s_load_dwordx2 s[10:11], s[0:1], 64
s_and_b32 s12, s2, 7
s_lshl_b32 s12, s12, 5
s_lshr_b32 s3, s2, 3
s_or_b32 s12, s12, s3
v_lshrrev_b32 v2, 6, v0
v_and_b32 v1, 63, v0
v_readfirstlane_b32 s13, v2
s_cmp_lt_u32 s12, {N-48*256}
s_cselect_b32 s14, 49, 48             ; s14 = nn
s_mov_b32 s15, 0
v_lshrrev_b32 v8, 2, v0
v_lshlrev_b32 v9, 10, v8
s_lshl_b32 s3, s12, 2
s_add_u32 s3, s3, {WS_TAB}
s_waitcnt lgkmcnt(0)
""")
    srd(a,16,4,N*128); srd(a,20,6,E*32); srd(a,24,10,WS_SIZE); srd(a,28,8,N*128)
    a(f"""
buffer_load_dword v10, v9, s[24:27], s3 offen
v_lshlrev_b32 v11, 4, v1
s_lshl_b32 s32, s13, 10
s_cmp_ge_u32 s13, 10
s_cbranch_scc1 K2_NOW
s_add_u32 m0, s32, {L_STG}
s_nop 0
buffer_load_dwordx4 v11, s[24:27], s32 offen lds
K2_NOW:
s_lshr_b32 s33, s13, 2                ; mt
s_and_b32 s34, s13, 3                 ; nt
v_and_b32 v12, 15, v1
v_lshrrev_b32 v13, 4, v1
s_lshl_b32 s35, s33, 4
v_add_u32 v14, s35, v12               ; j = 16mt + (l&15)
v_lshlrev_b32 v14, 15, v14            ; j*256*128
v_lshl_add_u32 v14, v13, 4, v14
s_lshl_b32 s35, s12, 7                ; key*128
buffer_load_dwordx4 v[16:19], v14, s[16:19], s35 offen
buffer_load_dwordx4 v[20:23], v14, s[16:19], s35 offen offset:64
s_lshl_b32 s36, s34, 10
s_add_u32 s37, s36, {WS_W2}
s_add_u32 s38, s36, {WS_W2+4096}
buffer_load_dwordx4 v[24:27], v11, s[24:27], s37 offen
buffer_load_dwordx4 v[28:31], v11, s[24:27], s38 offen
v_mov_b32 v40, 0
v_mov_b32 v41, 0
v_mov_b32 v42, 0
v_mov_b32 v43, 0
v_lshrrev_b32 v44, 5, v0
v_mul_u32_u24 v44, {ROWB}, v44
v_and_b32 v45, 31, v0
v_lshl_add_u32 v44, v45, 4, v44
ds_write_b128 v44, v[40:43]
v_cmp_gt_u32 vcc, {(NROW-32)*32}, v0
s_and_saveexec_b64 s[40:41], vcc
ds_write_b128 v44, v[40:43] offset:{32*ROWB}
s_mov_b64 exec, s[40:41]
v_lshlrev_b32 v46, 2, v1
s_cmp_lg_u32 s13, 0
s_cbranch_scc1 K2_ROUND
ds_write_b32 v46, v40 offset:{L_MISC+256}
K2_ROUND:
v_lshlrev_b32 v47, 4, v0
v_mov_b32 v48, {XPAD}
v_mov_b32 v49, v48
v_mov_b32 v50, v48
v_mov_b32 v51, v48
v_mov_b32 v52, {EPAD}
v_mov_b32 v53, v52
v_mov_b32 v54, v52
v_mov_b32 v55, v52
ds_write_b128 v47, v[48:51] offset:{L_XO}
ds_write_b128 v47, v[52:55] offset:{L_EO}
v_cmp_gt_u32 vcc, {(CAP*4-16384)//16}, v0
s_and_saveexec_b64 s[40:41], vcc
v_add_u32 v56, 16384, v47
ds_write_b128 v56, v[48:51] offset:{L_XO}
ds_write_b128 v56, v[52:55] offset:{L_EO}
s_mov_b64 exec, s[40:41]
s_mov_b32 s39, 32
s_cmp_eq_u32 s15, 0
s_cbranch_scc1 K2_FIRST
v_lshrrev_b32 v8, 2, v0
v_lshlrev_b32 v9, 10, v8
s_lshl_b32 s3, s12, 2
s_add_u32 s3, s3, {WS_TAB}
buffer_load_dword v10, v9, s[24:27], s3 offen
s_waitcnt vmcnt(0)
K2_FIRST:
s_waitcnt vmcnt(4)
v_cmp_gt_u32 vcc, {NCH}, v8
v_and_b32 v57, 3, v0
v_lshlrev_b32 v57, 2, v57             ; 4*sub
v_cndmask_b32 v10, 0, v10, vcc
v_lshrrev_b32 v58, 16, v10            ; count
v_and_b32 v59, 0xffff, v10            ; start
v_subrev_u32 v58, s15, v58
v_mul_u32_u24 v60, {CH}, v8           ; chunk*CH
v_add3_u32 v59, v59, v60, v57
v_add_lshl_u32 v59, v59, s15, 2
v_sub_u32 v61, v58, v57
v_cmp_lt_i32 vcc, 0, v61
v_mov_b32 v62, 0x7ffffff0
v_cmp_lt_i32 s[40:41], 16, v61
v_cndmask_b32 v63, v62, v59, vcc
s_mov_b32 s3, {WS_REC}
v_cndmask_b32 v62, v62, v59, s[40:41]
buffer_load_dwordx4 v[64:67], v63, s[24:27], s3 offen
buffer_load_dwordx4 v[68:71], v62, s[24:27], s3 offen offset:64
v_lshlrev_b32 v60, 5, v60
s_cmp_lg_u32 s15, 0
s_cbranch_scc1 K2_RECOUNT
s_waitcnt vmcnt(2)
v_mfma_f32_16x16x32_bf16 v[32:35], v[16:19], v[24:27], 0
v_mfma_f32_16x16x32_bf16 v[32:35], v[20:23], v[28:31], v[32:35]
; address: (16mt+4rq+i)*768 + 512 + ((16nt+n)%32)*8 + (nt>>1)*4
s_lshl_b32 s35, s33, 2
v_add_u32 v36, s35, v13               ; 4mt+rq
v_cmp_gt_u32 vcc, {NROW//4}, v36
v_mul_u32_u24 v36, {4*ROWB}, v36
v_lshl_add_u32 v36, v12, 3, v36
s_and_b32 s35, s34, 1
s_lshl_b32 s35, s35, 7
s_lshr_b32 s36, s34, 1
s_lshl_b32 s36, s36, 2
s_add_u32 s35, s35, s36
v_add_u32 v36, s35, v36
s_nop 3
""")
    for i in range(4):
        a(f"""v_cvt_pk_bf16_f32 v{40+i}, v{32+i}, v{32+i}
v_lshlrev_b32 v{44+i}, 16, v{40+i}
v_sub_f32 v{44+i}, v{32+i}, v{44+i}
v_cvt_pk_bf16_f32 v{40+i}, v{32+i}, v{44+i}""")
    a("s_and_saveexec_b64 s[40:41], vcc")
    for i in range(4):
        a(f"ds_write_b32 v36, v{40+i} offset:{512+i*ROWB}")
    a(f"""
s_mov_b64 exec, s[40:41]
K2_RECOUNT:
v_lshlrev_b32 v46, 2, v0
v_mov_b32 v40, 0
v_cmp_gt_u32 vcc, 512, v0
s_and_saveexec_b64 s[40:41], vcc
ds_write_b32 v46, v40 offset:{L_CNT}
s_mov_b64 exec, s[40:41]
s_lshr_b32 s35, s13, 1
s_lshl_b32 s35, s35, 8
s_add_u32 s35, s35, {L_CNT}
v_min_i32 v61, s39, v58
v_sub_u32 v61, v61, v57
v_mov_b32 v41, 1
v_cmp_lt_i32 s[60:61], s39, v58
""")
    for i in range(8):
        a(f"v_cmp_lt_i32 s[{44+2*i}:{45+2*i}], {(i&3)+16*(i>>2)}, v61")
    a(f"""
s_waitcnt lgkmcnt(0)
s_barrier
s_waitcnt vmcnt(0)
""")
    for i in range(8):
        a(f"""s_mov_b64 exec, s[{44+2*i}:{45+2*i}]
v_bfe_u32 v{72+i}, v{64+i}, 12, 6
v_lshl_add_u32 v{80+i}, v{72+i}, 2, s35
ds_add_rtn_u32 v{88+i}, v{80+i}, v41""")
    a(f"""
s_mov_b64 exec, s[60:61]
v_mov_b32 v42, s35
ds_add_u32 v42, v41 offset:252
s_mov_b64 exec, -1
s_waitcnt lgkmcnt(0)
s_barrier
s_cmp_lg_u32 s13, 0
s_cbranch_scc1 K2_NOTW0
v_lshlrev_b32 v46, 2, v1
""")
    for r in range(8): a(f"ds_read_b32 v{32+r}, v46 offset:{L_CNT+256*r}")
    a(f"ds_read_b32 v43, v46 offset:{L_MISC+256}")
    a("s_waitcnt lgkmcnt(0)")
    a("v_mov_b32 v48, 0")
    for r in range(8): a(f"v_add_u32 v{49+r}, v{48+r}, v{32+r}")
    a(f"""
v_cmp_gt_u32 vcc, 63, v1
s_nop 0
v_readlane_b32 s36, v56, 63
v_cndmask_b32 v56, 0, v56, vcc
v_add_u32 v44, 7, v56
v_and_b32 v44, -8, v44
v_mov_b32 v45, v44
""")
    scan_add(a,45)
    a(f"""
s_nop 0
v_readlane_b32 s37, v45, 63
v_sub_u32 v45, v45, v44
v_sub_u32 v44, v44, v56               ; npad
s_cmp_gt_u32 s37, {CAP}
s_cselect_b32 s38, 1, 0               ; overflow
s_cbranch_scc1 K2_W0PUB
v_add_u32 v43, v43, v44
ds_write_b32 v46, v43 offset:{L_MISC+256}
""")
    for r in range(8):
        a(f"""v_add_lshl_u32 v{48+r}, v{48+r}, v45, 2
ds_write_b32 v46, v{48+r} offset:{L_CNT+256*r}""")
    a(f"""
K2_W0PUB:
v_mov_b32 v32, s36
v_mov_b32 v33, s37
v_mov_b32 v34, s38
v_mov_b32 v35, 0
v_mov_b32 v36, {L_MISC}
ds_write_b128 v36, v[32:35]
K2_NOTW0:
""")
    a("s_mov_b32 s3, 0xffffff80")
    for i in range(8):
        a(f"""v_lshrrev_b32 v{96+i}, 11, v{64+i}
v_and_b32 v{96+i}, s3, v{96+i}
v_and_b32 v{104+i}, 0xfff, v{64+i}
v_lshl_add_u32 v{104+i}, v{104+i}, 5, v60
v_lshl_or_b32 v{104+i}, v{72+i}, 25, v{104+i}""")
    a(f"""
s_waitcnt lgkmcnt(0)
s_barrier
v_mov_b32 v36, {L_MISC}
ds_read_b128 v[32:35], v36
""")
    for i in range(8):
        a(f"""s_mov_b64 exec, s[{44+2*i}:{45+2*i}]
ds_read_b32 v{112+i}, v{80+i}""")
    a(f"""
s_mov_b64 exec, -1
s_waitcnt lgkmcnt(0)
v_readfirstlane_b32 s36, v32
v_readfirstlane_b32 s37, v33
v_readfirstlane_b32 s38, v34
s_cmp_eq_u32 s38, 0
s_cbranch_scc1 K2_NOOVF
s_waitcnt lgkmcnt(0)
s_mov_b32 s39, 16
s_barrier
s_branch K2_RECOUNT
K2_NOOVF:
""")
    for i in range(8):
        a(f"""s_mov_b64 exec, s[{44+2*i}:{45+2*i}]
v_lshl_add_u32 v{112+i}, v{88+i}, 2, v{112+i}
ds_write2st64_b32 v{112+i}, v{96+i}, v{104+i} offset0:{L_XO//256} offset1:{L_EO//256}""")
    a("s_mov_b64 exec, -1")
    a(f"""
s_cmp_lg_u32 s15, 0
s_cbranch_scc1 K2_WRELOAD
v_lshlrev_b32 v11, 4, v1
v_add_u32 v11, {L_STG}, v11
s_waitcnt lgkmcnt(0)
""")
    for f in range(10): a(f"ds_read_b128 v[{WB+4*f}:{WB+4*f+3}], v11 offset:{f*1024}")
    a(f"""
s_branch K2_WDONE
K2_WRELOAD:
v_lshlrev_b32 v11, 4, v1
s_waitcnt lgkmcnt(0)
""")
    for f in range(10):
        a(f"s_mov_b32 s3, {f*1024}\nbuffer_load_dwordx4 v[{WB+4*f}:{WB+4*f+3}], v11, s[24:27], s3 offen")
    a(f"""
s_waitcnt vmcnt(0)
K2_WDONE:
s_add_u32 s37, s37, 31
s_lshr_b32 s37, s37, 5                ; ngroups
s_lshl_b32 s42, s13, 12
s_add_u32 s42, s42, {L_STG}
s_add_u32 s43, s42, 1024
s_add_u32 s44, s42, 2048
s_add_u32 s45, s42, 3072
s_mov_b32 s46, 0xbfb8aa3b             ; -log2(e)
s_mov_b32 s47, 0xbfb8aa3b
s_mov_b32 s48, 0x30800000             ; 2^-30
s_mov_b32 s49, 0x30800000
s_mov_b32 s50, 0x1ffffff
s_mov_b32 s51, {ROWB}
s_mov_b32 s52, s13                    ; g = wave
v_and_b32 v8, 31, v1                  ; m / n
v_lshrrev_b32 v9, 5, v1               ; h
v_lshlrev_b32 v6, 3, v8               ; n*8
v_lshlrev_b32 v7, 4, v9               ; h*16
; t(m) = [h_m u c2 c1 c0], m=[u c2 h_m c1 c0]
v_bfe_u32 v10, v8, 2, 1               ; h_m
v_lshrrev_b32 v11, 3, v8              ; [u c2]
v_lshl_or_b32 v11, v10, 2, v11        ; e' = t>>2 = [h_m u c2]
v_and_b32 v126, 3, v8                 ; q = t&3
v_lshl_or_b32 v127, v11, 2, v126      ; t
s_lshl_b32 s3, s13, 7
s_add_u32 s53, s3, {L_EO}
v_lshl_add_u32 v3, v127, 2, s53       ; a_e
v_lshl_add_u32 v4, v9, 6, s53         ; a_s
s_add_u32 s53, s3, {L_XO}
v_lshrrev_b32 v121, 3, v1
v_lshl_add_u32 v2, v121, 4, s53       ; a_x
; A' constants
v_cmp_eq_u32 vcc, v10, v9
v_mov_b32 v{QB+6}, 0
v_mov_b32 v{QB+7}, 0
v_mov_b32 v{QB+4}, 0x3f803f80
v_cndmask_b32 v{QB+4}, 0, v{QB+4}, vcc
v_cmp_gt_u32 vcc, 16, v8
s_nop 1
v_cndmask_b32 v{QB+5}, v{QB+4}, 0, vcc
v_cndmask_b32 v{QB+4}, 0, v{QB+4}, vcc
v_and_b32 v10, {SWZ}, v11
v_bcnt_u32_b32 v10, v10, 0
v_and_b32 v10, 1, v10
v_lshl_or_b32 v10, v10, 2, v126       ; f(t)
v_xor_b32 v10, v10, v9                ; f ^ h
v_lshlrev_b32 v126, 10, v126          ; q*1024
v_lshl_add_u32 v126, v11, 7, v126     ; + e'*128
v_add_u32 v126, s42, v126
""")
    for s in range(4):
        a(f"""v_xor_b32 v127, {2*s}, v10
v_lshl_add_u32 v{AR+s}, v127, 4, v126""")
    a(f"""
v_and_b32 v10, {SWZ}, v121
v_bcnt_u32_b32 v10, v10, 0
v_and_b32 v10, 1, v10
v_lshlrev_b32 v10, 2, v10
v_and_b32 v11, 7, v1
v_xor_b32 v10, v10, v11
v_lshlrev_b32 v5, 4, v10
s_waitcnt lgkmcnt(0)
s_barrier
s_cmp_ge_u32 s52, s37
s_cbranch_scc1 K2_LOOPEND
ds_read_b128 v[{XO}:{XO+3}], v2
ds_read_b32 v{EO}, v3
ds_read2_b32 v[{SL}:{SL+1}], v4 offset0:0 offset1:8
s_waitcnt lgkmcnt(0)
""")
    def issue_loads():
        for q in range(4):
            a(f"""s_mov_b32 m0, s{42+q}
v_xad_u32 v{XO+q}, v5, {16*q}, v{XO+q}
buffer_load_dwordx4 v{XO+q}, s[16:19], 0 offen lds""")
        a(f"""v_and_or_b32 v{EO}, v{EO}, s50, v7
buffer_load_dwordx4 v[{VE}:{VE+3}], v{EO}, s[20:23], 0 offen {opt.get('epol','')}""")
    def slot_addr_and_q():
        a(f"""v_lshrrev_b32 v{SA}, 25, v{SL}
v_lshrrev_b32 v{SA+1}, 25, v{SL+1}
v_mad_u32_u24 v{SA}, v{SA}, s51, v6
v_mad_u32_u24 v{SA+1}, v{SA+1}, s51, v6
ds_read_b32 v{QB}, v{SA} offset:512
ds_read_b32 v{QB+1}, v{SA+1} offset:512
ds_read_b32 v{QB+2}, v{SA} offset:516
ds_read_b32 v{QB+3}, v{SA+1} offset:516""")
    def next_idx():
        a(f"""v_add_u32 v2, 2048, v2
v_add_u32 v3, 2048, v3
v_add_u32 v4, 2048, v4
ds_read_b128 v[{XO}:{XO+3}], v2
ds_read_b32 v{EO}, v3
ds_read2_b32 v[{SL}:{SL+1}], v4 offset0:0 offset1:8""")
    issue_loads(); slot_addr_and_q(); next_idx()
    W=lambda s,t: f"v[{WB+4*(2*s+t)}:{WB+4*(2*s+t)+3}]"
    Dt=lambda t: (f"v[{D0}:{D0+15}]" if t==0 else f"v[{D1}:{D1+15}]")
    MF="v_mfma_f32_32x32x16_bf16"
    a(f"""
K2_LOOP:
s_waitcnt vmcnt(0)
""")
    for s in range(4): a(f"ds_read_b128 v[{AX+4*s}:{AX+4*s+3}], v{AR+s}")
    a(f"""
{MF} {Dt(0)}, v[{VE}:{VE+3}], {W(4,0)}, 0
{MF} {Dt(1)}, v[{VE}:{VE+3}], {W(4,1)}, 0
s_waitcnt lgkmcnt(4)
{MF} {Dt(0)}, v[{QB+4}:{QB+7}], v[{QB}:{QB+3}], {Dt(0)}
{MF} {Dt(1)}, v[{QB+4}:{QB+7}], v[{QB+2}:{QB+5}], {Dt(1)}
s_add_u32 s52, s52, 16
s_waitcnt lgkmcnt(0)
s_cmp_ge_u32 s52, s37
s_cbranch_scc1 K2_NOLOAD
""")
    issue_loads()
    a("K2_NOLOAD:")
    for t in range(2):
        for s in range(4):
            a(f"{MF} {Dt(t)}, v[{AX+4*s}:{AX+4*s+3}], {W(s,t)}, {Dt(t)}")
    a("s_nop 7")
    def P(r): return f"v[{r}:{r+1}]"
    def octets(zb, tile):
        O=[(zb,AX,8,0),(zb+8,AX+8,10,1)]
        seq=[]
        for (z,t,p,u) in O:
            s=[]
            s.append([f"v_pk_mul_f32 {P(t+2*i)}, {P(z+2*i)}, s[46:47]" for i in range(4)])
            s.append([f"v_exp_f32 v{t+i}, v{t+i}" for i in range(8)])
            s.append([f"v_pk_fma_f32 {P(t+2*i)}, {P(t+2*i)}, s[48:49], s[48:49] clamp" for i in range(4)])
            A_,B_,C_,D_=[P(z+2*i) for i in range(4)]
            tA,tB,tC,tD=[P(t+2*i) for i in range(4)]
            s.append([f"v_pk_mul_f32 {P(p)}, {tA}, {tB}", f"v_pk_mul_f32 {A_}, {A_}, {tB}", f"v_pk_mul_f32 {C_}, {C_}, {tD}"])
            s.append([f"v_pk_fma_f32 {A_}, {B_}, {tA}, {A_}", f"v_pk_fma_f32 {C_}, {D_}, {tC}, {C_}", f"v_pk_mul_f32 {B_}, {tC}, {tD}"])
            s.append([f"v_pk_mul_f32 {A_}, {A_}, {B_}", f"v_pk_mul_f32 {B_}, {P(p)}, {B_}"])
            s.append([f"v_pk_fma_f32 {A_}, {C_}, {P(p)}, {A_}", f"v_rcp_f32 v{z+2}, v{z+2}", f"v_rcp_f32 v{z+3}, v{z+3}"])
            s.append([f"v_mul_f32 v{z+4}, v{z}, v{z+2}"])
            s.append([f"v_fmac_f32 v{z+4}, v{z+1}, v{z+3}"])
            s.append([f"v_cvt_f64_f32 {P(z+6)}, v{z+4}"])
            s.append([f"ds_add_f64 v{SA+u}, {P(z+6)} offset:{256*tile}"])
            seq.append(s)
        for st in range(len(seq[0])):
            for o in range(2):
                for ins in seq[o][st]: a(ins)
    octets(D0,0)
    octets(D1,1)
    a(f"""
s_cmp_ge_u32 s52, s37
s_cbranch_scc1 K2_LOOPEND
""")
    slot_addr_and_q(); next_idx()
    a(f"""
s_branch K2_LOOP
K2_LOOPEND:
s_cmp_eq_u32 s36, 0
s_cbranch_scc1 K2_EPI
s_add_u32 s15, s15, s39
s_waitcnt lgkmcnt(0)
s_barrier
s_branch K2_ROUND
K2_EPI:
v_and_b32 v12, 15, v1
v_lshrrev_b32 v13, 4, v1
s_lshl_b32 s35, s33, 4
v_add_u32 v14, s35, v12
v_lshlrev_b32 v15, 15, v14
v_lshl_add_u32 v16, v13, 4, v15
s_lshl_b32 s35, s12, 7
buffer_load_dwordx4 v[64:67], v16, s[16:19], s35 offen
buffer_load_dwordx4 v[68:71], v16, s[16:19], s35 offen offset:64
v_lshlrev_b32 v11, 4, v1
s_lshl_b32 s36, s34, 10
""")
    for s in range(4):
        a(f"s_add_u32 s37, s36, {WS_WU+4096*s}\nbuffer_load_dwordx4 v[{80+4*s}:{83+4*s}], v11, s[24:27], s37 offen")
    a(f"""
v_lshrrev_b32 v20, 4, v0
v_and_b32 v21, 15, v0
v_mul_u32_u24 v22, {ROWB}, v20
v_lshl_add_u32 v23, v21, 5, v22
v_and_b32 v24, 7, v21
v_lshl_add_u32 v24, v24, 5, v22       ; j*768 + (f%32)*8
v_lshrrev_b32 v25, 3, v21
v_lshl_add_u32 v24, v25, 2, v24       ; + tile*4
v_lshlrev_b32 v25, 2, v20
v_mul_u32_u24 v26, {AGGB_STRIDE}, v20
v_lshl_add_u32 v26, v21, 3, v26
v_add_u32 v26, {L_STG}, v26
v_cmp_gt_u32 vcc, {NROW}, v20
s_waitcnt lgkmcnt(0)
s_barrier
s_and_saveexec_b64 s[40:41], vcc
s_cbranch_execz K2_E1DONE
ds_read_b128 v[32:35], v23
ds_read_b128 v[36:39], v23 offset:16
ds_read2_b32 v[40:41], v24 offset0:128 offset1:130
ds_read2_b32 v[42:43], v24 offset0:132 offset1:134
ds_read_b32 v44, v25 offset:{L_MISC+256}
s_mov_b32 s3, 0xffff0000
s_waitcnt lgkmcnt(0)
v_cvt_f32_u32 v44, v44
""")
    for i in range(4):
        a(f"""v_lshlrev_b32 v{48+i}, 16, v{40+i}
v_and_b32 v{40+i}, s3, v{40+i}
v_add_f32 v{40+i}, v{40+i}, v{48+i}
v_mul_f32 v{48+i}, s46, v{40+i}
v_exp_f32 v{48+i}, v{48+i}
v_cvt_f32_f64 v{52+i}, v[{32+2*i}:{33+2*i}]
v_add_f32 v{48+i}, 1.0, v{48+i}
v_rcp_f32 v{48+i}, v{48+i}
v_mul_f32 v{52+i}, s48, v{52+i}
v_mul_f32 v{40+i}, v{40+i}, v{48+i}
v_fma_f32 v{52+i}, -v44, v{40+i}, v{52+i}""")
    a(f"""
v_cvt_pk_bf16_f32 v56, v52, v53
v_cvt_pk_bf16_f32 v57, v54, v55
ds_write_b64 v26, v[56:57]
K2_E1DONE:
s_mov_b64 exec, s[40:41]
v_mul_u32_u24 v26, {AGGB_STRIDE}, v14
v_lshl_add_u32 v26, v13, 4, v26
v_add_u32 v26, {L_STG}, v26
s_waitcnt lgkmcnt(0)
s_barrier
ds_read_b128 v[72:75], v26
ds_read_b128 v[76:79], v26 offset:64
s_waitcnt vmcnt(0)
v_mfma_f32_16x16x32_bf16 v[32:35], v[80:83], v[64:67], 0
v_mfma_f32_16x16x32_bf16 v[32:35], v[84:87], v[68:71], v[32:35]
s_waitcnt lgkmcnt(0)
v_mfma_f32_16x16x32_bf16 v[32:35], v[88:91], v[72:75], v[32:35]
v_mfma_f32_16x16x32_bf16 v[32:35], v[92:95], v[76:79], v[32:35]
v_lshl_add_u32 v15, v13, 3, v15
s_lshl_b32 s36, s34, 5
s_add_u32 s35, s35, s36
s_mov_b32 s3, 0xffff0000
s_nop 5
v_cvt_pk_bf16_f32 v36, v32, v33
v_cvt_pk_bf16_f32 v37, v34, v35
v_lshlrev_b32 v32, 16, v36
v_and_b32 v33, s3, v36
v_lshlrev_b32 v34, 16, v37
v_and_b32 v35, s3, v37
""")
    for i in range(4): a(f"v_mul_f32 v{40+i}, s46, v{32+i}")
    for i in range(4): a(f"v_exp_f32 v{40+i}, v{40+i}")
    for i in range(4): a(f"v_add_f32 v{40+i}, 1.0, v{40+i}")
    for i in range(4): a(f"v_rcp_f32 v{40+i}, v{40+i}")
    for i in range(4): a(f"v_mul_f32 v{40+i}, v{32+i}, v{40+i}")
    a(f"""
v_cvt_pk_bf16_f32 v36, v40, v41
v_cvt_pk_bf16_f32 v37, v42, v43
buffer_store_dwordx2 v[36:37], v15, s[28:31], s35 offen
K2_END:""")
    return a.txt(), 128

def kd(name, nv):
    return f""".amdhsa_kernel {name}
  .amdhsa_next_free_vgpr {nv}
  .amdhsa_next_free_sgpr 72
  .amdhsa_accum_offset {(nv+3)//4*4}
  .amdhsa_group_segment_fixed_size 0
  .amdhsa_kernarg_size 72
  .amdhsa_user_sgpr_count 2
  .amdhsa_user_sgpr_kernarg_segment_ptr 1
  .amdhsa_system_sgpr_workgroup_id_x 1
  .amdhsa_float_denorm_mode_32 3
.end_amdhsa_kernel
"""
def build(opt):
    b1,n1=k1(opt); b2,n2=k2(opt)
    s=f"""; MPNN edge-MLP: K1 partitions edges by destination bucket (and re-lays-out weights), K2 does everything else.
; @launch kernel=mpnn_part_kernel grid=({K1_GRID},1,1) block=({K1_BLOCK},1,1) lds={K1_LDS}
; @launch kernel=mpnn_main_kernel grid=(256,1,1) block=(1024,1,1) lds={K2_LDS}
.amdgcn_target "amdgcn-amd-amdhsa--gfx950"
.text
.globl mpnn_part_kernel
.p2align 8
.type mpnn_part_kernel,@function
mpnn_part_kernel:
{b1}    s_endpgm
.globl mpnn_main_kernel
.p2align 8
.type mpnn_main_kernel,@function
mpnn_main_kernel:
{b2}    s_endpgm
.section .rodata,"a"
.p2align 6
{kd('mpnn_part_kernel',n1)}.p2align 6
{kd('mpnn_main_kernel',n2)}"""
    return s
if __name__=="__main__":
    out=sys.argv[1] if len(sys.argv)>1 else "standalone__mpnn_edge_mlp__graph.s"
    opt=dict(kv.split("=",1) for kv in sys.argv[2:])
    open(out,"w").write(build(opt))
    print("SWZ",SWZ,"K2_LDS",K2_LDS)
```

```python
import sys
N=12500; E=800000; CH=3200; NCH=250
WS_WM=0; WS_W2=10240; WS_WU=18432; WS_TAB=65536; WS_REC=524288
WS_SIZE=WS_REC+E*4+4096

class A:
    def __init__(s): s.l=[]
    def __call__(s, txt):
        for ln in txt.strip("\n").split("\n"):
            ln=ln.strip()
            if ln: s.l.append(("" if ln.endswith(":") else "    ")+ln)
    def txt(s): return "\n".join(s.l)+"\n"

def srd(a,d,b,n):
    a(f"""s_mov_b32 s{d}, s{b}
s_and_b32 s{d+1}, s{b+1}, 0xffff
s_mov_b32 s{d+2}, {n}
s_mov_b32 s{d+3}, 0x20000""")

def scan_add(a, v):
    for sh in (1,2,4,8):
        a(f"s_nop 1\nv_add_u32_dpp v{v}, v{v}, v{v} row_shr:{sh} row_mask:0xf bank_mask:0xf bound_ctrl:0")
    a(f"s_nop 1\nv_add_u32_dpp v{v}, v{v}, v{v} row_bcast:15 row_mask:0xa bank_mask:0xf")
    a(f"s_nop 1\nv_add_u32_dpp v{v}, v{v}, v{v} row_bcast:31 row_mask:0xc bank_mask:0xf")

K1_BLOCK=832
K1_GRID=256
K1_STAGE=1024
K1_LDS=1024+CH*4
def xpf(a,opt):
    if not opt.get('xpf'): return
    srd(a,36,32,N*128)
    a(f"""s_lshr_b32 s34, s2, 3
s_mul_i32 s34, s34, {391*128}
v_lshlrev_b32 v23, 7, v0
v_cmp_gt_u32 vcc, 391, v0
v_mov_b32 v22, 0x7ffffff0
s_nop 0
v_cndmask_b32 v23, v22, v23, vcc
buffer_load_dword v23, v23, s[36:39], s34 offen""")
def k1(opt):
    a=A()
    a(f"""
s_cmp_ge_u32 s2, {K1_GRID}
s_cbranch_scc1 K1_END
s_load_dwordx4 s[4:7], s[0:1], 16
s_load_dwordx4 s[8:11], s[0:1], 32
s_load_dwordx2 s[12:13], s[0:1], 64
s_load_dwordx2 s[32:33], s[0:1], 0
v_lshrrev_b32 v2, 6, v0
v_and_b32 v3, 63, v0
v_readfirstlane_b32 s14, v2
s_cmp_ge_u32 s2, {NCH}
s_cbranch_scc1 K1_WPREP
v_lshlrev_b32 v1, 4, v0
v_lshlrev_b32 v2, 2, v0
v_mov_b32 v20, 0
v_mov_b32 v21, 1
v_cmp_gt_u32 vcc, 256, v0
s_and_saveexec_b64 s[30:31], vcc
ds_write_b32 v2, v20
s_mov_b64 exec, s[30:31]
s_mul_i32 s3, s2, {CH*4}
v_cmp_gt_u32 vcc, {CH//4}, v0
s_waitcnt lgkmcnt(0)
""")
    srd(a,16,4,E*4); srd(a,20,6,E*4); srd(a,24,12,WS_SIZE)
    a(f"""
s_and_b64 exec, exec, vcc
buffer_load_dwordx4 v[4:7], v1, s[20:23], s3 offen nt
buffer_load_dwordx4 v[8:11], v1, s[16:19], s3 offen nt
""")
    xpf(a,opt)
    a(f"""
s_barrier
s_waitcnt vmcnt({2 if opt.get('xpf') else 1})
""")
    for i in range(4):
        a(f"""v_lshlrev_b32 v{12+i}, 2, v{4+i}
v_and_b32 v{12+i}, 0x3fc, v{12+i}
ds_add_rtn_u32 v{16+i}, v{12+i}, v21""")
    for i in range(4):
        a(f"""v_lshrrev_b32 v{4+i}, 8, v{4+i}
v_add_u32 v22, {i}, v2
v_lshl_or_b32 v{4+i}, v{4+i}, 12, v22""")
    a(f"s_waitcnt vmcnt({1 if opt.get('xpf') else 0})")
    for i in range(4):
        a(f"v_lshl_or_b32 v{4+i}, v{8+i}, 18, v{4+i}")
    a(f"""
s_waitcnt lgkmcnt(0)
s_barrier
s_cmp_lg_u32 s14, 0
s_cbranch_scc1 K1_SKIPSCAN
ds_read_b128 v[24:27], v1
s_waitcnt lgkmcnt(0)
v_add_u32 v28, v24, v25
v_add_u32 v29, v28, v26
v_add_u32 v30, v29, v27
v_mov_b32 v31, v30
""")
    scan_add(a,31)
    a(f"""
v_sub_u32 v32, v31, v30
v_add_u32 v33, v32, v24
v_add_u32 v34, v32, v28
v_add_u32 v35, v32, v29
ds_write_b128 v1, v[32:35]
v_lshl_or_b32 v36, v24, 16, v32
v_lshl_or_b32 v37, v25, 16, v33
v_lshl_or_b32 v38, v26, 16, v34
v_lshl_or_b32 v39, v27, 16, v35
s_lshl_b32 s15, s2, 10
s_add_u32 s15, s15, {WS_TAB}
buffer_store_dwordx4 v[36:39], v1, s[24:27], s15 offen
s_waitcnt lgkmcnt(0)
K1_SKIPSCAN:
s_barrier
""")
    for i in range(4): a(f"ds_read_b32 v{24+i}, v{12+i}")
    for i in range(4):
        a(f"""s_waitcnt lgkmcnt({3-i})
v_add_lshl_u32 v{24+i}, v{24+i}, v{16+i}, 2""")
    for i in range(4):
        a(f"ds_write_b32 v{24+i}, v{4+i} offset:{K1_STAGE}")
    a(f"""
s_waitcnt lgkmcnt(0)
s_barrier
ds_read_b128 v[24:27], v1 offset:{K1_STAGE}
s_add_u32 s3, s3, {WS_REC}
s_waitcnt lgkmcnt(0)
buffer_store_dwordx4 v[24:27], v1, s[24:27], s3 offen
s_endpgm
K1_WPREP:
s_waitcnt lgkmcnt(0)
""")
    xpf(a,opt)
    a(f"""
s_sub_u32 s15, s2, {NCH}
s_mul_i32 s15, s15, 13
s_add_u32 s15, s15, s14
s_cmp_ge_u32 s15, 34
s_cbranch_scc1 K1_END
s_waitcnt lgkmcnt(0)
""")
    srd(a,24,12,WS_SIZE)
    a(f"""
s_mov_b32 s16, s8
s_and_b32 s17, s9, 0xffff
s_mov_b32 s18, {144*128}
s_mov_b32 s19, 0x20000
s_cmp_ge_u32 s15, 10
s_cbranch_scc1 K1_W16
s_lshr_b32 s20, s15, 1
s_and_b32 s21, s15, 1
s_lshl_b32 s22, s20, 4
s_cmp_eq_u32 s20, 4
s_cselect_b32 s22, 128, s22
s_lshl_b32 s22, s22, 7
s_lshl_b32 s21, s21, 6
s_add_u32 s22, s22, s21
v_and_b32 v4, 31, v3
v_lshrrev_b32 v5, 5, v3
s_branch K1_WLOAD
K1_W16:
s_sub_u32 s20, s15, 10
s_mov_b32 s23, 64
s_cmp_ge_u32 s15, 18
s_cbranch_scc0 K1_W16B
s_sub_u32 s20, s15, 18
s_mov_b32 s23, 0
s_mov_b32 s16, s10
s_and_b32 s17, s11, 0xffff
s_mov_b32 s18, {128*128}
K1_W16B:
s_lshr_b32 s21, s20, 2
s_lshl_b32 s21, s21, 5
s_add_u32 s22, s21, s23
s_lshl_b32 s22, s22, 7
s_and_b32 s21, s20, 3
s_lshl_b32 s21, s21, 5
s_add_u32 s22, s22, s21
v_and_b32 v4, 15, v3
v_lshrrev_b32 v5, 4, v3
K1_WLOAD:
v_lshlrev_b32 v4, 1, v4
v_lshl_add_u32 v4, v5, 10, v4
""")
    for j in range(8):
        a(f"buffer_load_ushort v{8+j}, v4, s[16:19], s22 offen offset:{j*128}")
    a("v_lshlrev_b32 v6, 4, v3\ns_lshl_b32 s15, s15, 10\ns_waitcnt vmcnt(0)")
    for j in range(4):
        a(f"v_lshl_or_b32 v{16+j}, v{9+2*j}, 16, v{8+2*j}")
    a("""buffer_store_dwordx4 v[16:19], v6, s[24:27], s15 offen
K1_END:""")
    return a.txt(), 40

NW=12
ROWB=768; NROW=52
KMAX=14; ROWK=49*32
GRIDB=22016; DSLOT=KMAX*ROWK
L_CNT=NROW*ROWB
L_BASE=L_CNT+NW*256
L_PERM=L_BASE+NW*256
L_XO=L_PERM+4096
L_EO=L_XO+GRIDB
L_STG=L_EO+GRIDB
STGW=5120
K2_LDS=L_STG+NW*STGW
AGGB_STRIDE=144
XPAD=0x7fffff80
EPAD=0x7fffffe0
PERM_DUMMY=DSLOT|((49*ROWB)<<16)
assert GRIDB%256==0 and L_XO%32==0 and DSLOT+32<=GRIDB and K2_LDS<=163840
SWZ=4

def k2(opt):
    a=A()
    DBG=opt.get('dbg')
    def stamp(i, wait=False):
        if DBG:
            a(f"{'s_memrealtime' if opt.get('rt') else 's_memtime'} s[{72+2*i}:{73+2*i}]")
            if wait: a("s_waitcnt lgkmcnt(0)")
    PA1=2; PA3=3; CX=4; CE=5; N8=6; CDX=7; CDE=8; AR=9; P1=14; EOr=15; P3=16; SX=18; SY=20; AXA=22; AEA=23
    XOr=24; QB=28; AX=36; AE=52; NP=56; T=64; PT=80; FT=84; D0=88; D1=104; WB=120
    REC=36; XOF=48; CA=60; LR=72; B4=84; TMP=96
    MK=44
    a(f"""
s_cmp_ge_u32 s2, 256
s_cbranch_scc1 K2_END""")
    stamp(0)
    a(f"""
s_load_dwordx4 s[4:7], s[0:1], 0
s_load_dwordx2 s[8:9], s[0:1], 48
s_load_dwordx2 s[10:11], s[0:1], 64
s_and_b32 s40, s2, 7
s_lshl_b32 s12, s40, 5
s_lshr_b32 s41, s2, 3
s_or_b32 s12, s12, s41
v_lshrrev_b32 v{TMP}, 6, v0
v_and_b32 v1, 63, v0
v_readfirstlane_b32 s13, v{TMP}
s_mov_b32 s15, 0
v_mul_u32_u24 v{TMP+1}, 43, v1
v_lshrrev_b32 v{TMP+1}, 7, v{TMP+1}   ; l/3
v_mul_u32_u24 v{TMP+2}, 3, v{TMP+1}
v_sub_u32 v{TMP+2}, v1, v{TMP+2}
v_lshlrev_b32 v161, 2, v{TMP+2}       ; v161 = 4*sub
s_mul_i32 s3, s13, 21
v_add_u32 v160, s3, v{TMP+1}          ; v160 = segment
v_cmp_gt_u32 vcc, 63, v1
v_mov_b32 v{TMP+3}, 255
v_lshlrev_b32 v{TMP+4}, 4, v1         ; lane*16
v_cndmask_b32 v160, v{TMP+3}, v160, vcc
v_lshlrev_b32 v{TMP+5}, 10, v160
s_lshl_b32 s14, s12, 2
s_add_u32 s14, s14, {WS_TAB}
; record warm-up addresses: tid<192: chunk = 8*(wg>>3) + tid/24, line = tid%24
v_mul_u32_u24 v{TMP+6}, 171, v0
v_lshrrev_b32 v{TMP+6}, 12, v{TMP+6}
v_mul_u32_u24 v{TMP+7}, 24, v{TMP+6}
v_sub_u32 v{TMP+7}, v0, v{TMP+7}
v_mul_u32_u24 v{TMP+6}, {CH*4}, v{TMP+6}
v_lshl_add_u32 v{TMP+6}, v{TMP+7}, 7, v{TMP+6}
s_mul_i32 s41, s41, {8*CH*4}
s_mul_i32 s40, s40, 1600
s_add_u32 s41, s41, s40
s_add_u32 s41, s41, {WS_REC-640}
s_waitcnt lgkmcnt(0)""")
    stamp(1)
    srd(a,24,10,WS_SIZE)
    a(f"""
buffer_load_dword v{TMP+8}, v{TMP+5}, s[24:27], s14 offen
s_cmp_ge_u32 s13, 3
s_cbranch_scc1 K2_NOWARM
buffer_load_dword v{TMP+9}, v{TMP+6}, s[24:27], s41 offen
K2_NOWARM:""")
    srd(a,16,4,N*128); srd(a,20,6,E*32); srd(a,28,8,N*128)
    a(f"""
s_lshr_b32 s33, s13, 2                ; mt
s_and_b32 s34, s13, 3                 ; nt
v_and_b32 v162, 15, v1
v_lshrrev_b32 v163, 4, v1
v_lshlrev_b32 v164, 15, v162
v_lshl_add_u32 v164, v163, 4, v164    ; (l&15)*32768 + kq*16
s_lshl_b32 s35, s12, 7
s_lshl_b32 s36, s33, 19
s_add_u32 s68, s35, s36
s_add_u32 s69, s35, {3<<19}
buffer_load_dwordx4 v[{WB}:{WB+3}], v164, s[16:19], s68 offen
buffer_load_dwordx4 v[{WB+4}:{WB+7}], v164, s[16:19], s68 offen offset:64
buffer_load_dwordx4 v[{WB+8}:{WB+11}], v164, s[16:19], s69 offen
buffer_load_dwordx4 v[{WB+12}:{WB+15}], v164, s[16:19], s69 offen offset:64
s_lshl_b32 s36, s34, 10
s_add_u32 s37, s36, {WS_W2}
s_add_u32 s38, s36, {WS_W2+4096}
buffer_load_dwordx4 v[{WB+16}:{WB+19}], v{TMP+4}, s[24:27], s37 offen
buffer_load_dwordx4 v[{WB+20}:{WB+23}], v{TMP+4}, s[24:27], s38 offen
s_lshl_b32 s32, s13, 10
s_add_u32 m0, s32, {L_STG}
s_nop 0
buffer_load_dwordx4 v{TMP+4}, s[24:27], s32 offen lds
v_mov_b32 v{T}, 0
v_mov_b32 v{T+1}, 0
v_mov_b32 v{T+2}, 0
v_mov_b32 v{T+3}, 0
v_lshrrev_b32 v{T+4}, 5, v0
v_mul_u32_u24 v{T+4}, {ROWB}, v{T+4}
v_and_b32 v{T+5}, 31, v0
v_lshl_add_u32 v{T+4}, v{T+5}, 4, v{T+4}
ds_write_b128 v{T+4}, v[{T}:{T+3}]
ds_write_b128 v{T+4}, v[{T}:{T+3}] offset:{24*ROWB}
s_cmp_ge_u32 s13, 2
s_cbranch_scc1 K2_Z3
ds_write_b128 v{T+4}, v[{T}:{T+3}] offset:{48*ROWB}
K2_Z3:
s_mul_i32 s42, s13, {STGW}
s_add_u32 s42, s42, {L_STG}
s_mov_b32 s70, 0xbfb8aa3b             ; -log2(e)
s_mov_b32 s71, 0xbfb8aa3b
s_mov_b32 s96, 0x30800000             ; 2^-30
s_mov_b32 s97, 0x30800000
v_and_b32 v{T+6}, 31, v1              ; m / n
v_lshrrev_b32 v{T+7}, 5, v1           ; h
v_lshlrev_b32 v{N8}, 3, v{T+6}
v_bfe_u32 v{T+8}, v{T+6}, 2, 1        ; h_m
v_lshrrev_b32 v{T+9}, 3, v{T+6}       ; [u c2]
v_lshl_or_b32 v{T+9}, v{T+8}, 2, v{T+9}   ; e' = [h_m u c2]
v_and_b32 v{T+10}, 3, v{T+6}          ; q
v_lshl_or_b32 v{T+11}, v{T+9}, 2, v{T+10} ; t
v_cmp_eq_u32 vcc, v{T+8}, v{T+7}
v_mov_b32 v{QB+6}, 0
v_mov_b32 v{QB+7}, 0
v_mov_b32 v{QB+4}, 0x3f803f80
v_cndmask_b32 v{QB+4}, 0, v{QB+4}, vcc
v_cmp_gt_u32 vcc, 16, v{T+6}
v_lshl_or_b32 v{T+12}, v{T+8}, 2, v{T+10} ; f(t) = q | h_m<<2
v_xor_b32 v{T+12}, v{T+12}, v{T+7}    ; f ^ h
v_cndmask_b32 v{QB+5}, v{QB+4}, 0, vcc
v_cndmask_b32 v{QB+4}, 0, v{QB+4}, vcc
v_lshlrev_b32 v{T+13}, 10, v{T+10}
v_lshl_add_u32 v{T+13}, v{T+9}, 7, v{T+13}
v_add_u32 v{T+13}, s42, v{T+13}
""")
    for s in range(4):
        a(f"""v_xor_b32 v{T+14}, {2*s}, v{T+12}
v_lshl_add_u32 v{AR+s}, v{T+14}, 4, v{T+13}""")
    a(f"""
v_bfe_u32 v{T+14}, v{T+11}, 3, 1
v_xor_b32 v{T+14}, v{T+14}, v{T+7}
v_lshlrev_b32 v{T+14}, 4, v{T+14}
v_lshl_add_u32 v{T+14}, v{T+11}, 5, v{T+14}
s_add_u32 s3, s42, 4096
v_add_u32 v{AR+4}, s3, v{T+14}
v_lshlrev_b32 v{T+14}, 2, v{T+7}
v_and_b32 v{T+15}, 7, v1
v_xor_b32 v{T+14}, v{T+14}, v{T+15}
v_lshlrev_b32 v{CDX}, 4, v{T+14}
v_lshrrev_b32 v{T+14}, 4, v1
v_xor_b32 v{T+14}, v{T+14}, v1
v_and_b32 v{T+14}, 1, v{T+14}
v_lshlrev_b32 v{CDE}, 4, v{T+14}
v_bfe_u32 v{T+14}, v1, 3, 1
v_lshlrev_b32 v{T+14}, 4, v{T+14}
v_add_u32 v{CX}, {L_XO}, v{T+14}
v_bfe_u32 v{T+14}, v1, 1, 3
v_lshlrev_b32 v{T+14}, 2, v{T+14}
v_add_u32 v{CE}, {L_EO}, v{T+14}
s_lshl_b32 s35, s13, 8
s_add_u32 s35, s35, {L_CNT}
K2_ROUND:
v_lshlrev_b32 v{T+4}, 4, v0
v_add_u32 v{T+5}, {L_XO}, v{T+4}
v_add_u32 v{T+6}, {L_EO}, v{T+4}
v_mov_b32 v{T+8}, {XPAD}
v_mov_b32 v{T+9}, v{T+8}
v_mov_b32 v{T+10}, v{T+8}
v_mov_b32 v{T+11}, v{T+8}
v_mov_b32 v{T+12}, {PERM_DUMMY}
v_mov_b32 v{T+13}, v{T+12}
v_mov_b32 v{T+14}, v{T+12}
v_mov_b32 v{T+15}, v{T+12}
ds_write_b128 v{T+5}, v[{T+8}:{T+11}]
ds_write_b128 v{T+6}, v[{T+8}:{T+11}]
v_cmp_gt_u32 vcc, {(GRIDB-12288)//16}, v0
s_and_saveexec_b64 s[40:41], vcc
ds_write_b128 v{T+5}, v[{T+8}:{T+11}] offset:12288
ds_write_b128 v{T+6}, v[{T+8}:{T+11}] offset:12288
s_mov_b64 exec, s[40:41]
s_cmp_ge_u32 s13, 4
s_cbranch_scc1 K2_NOPF
ds_write_b128 v{T+4}, v[{T+12}:{T+15}] offset:{L_PERM}
K2_NOPF:
s_mov_b32 s39, 36                     ; R
s_mov_b32 s38, 0
s_cmp_eq_u32 s15, 0
s_cbranch_scc1 K2_FIRST
v_lshlrev_b32 v{TMP+5}, 10, v160
buffer_load_dword v{TMP+8}, v{TMP+5}, s[24:27], s14 offen
s_waitcnt vmcnt(0)
K2_FIRST:
v_cmp_gt_u32 vcc, {NCH}, v160
v_mul_u32_u24 v165, {CH}, v160        ; chunk*CH
v_mov_b32 v{TMP+10}, 0x7ffffff0
s_mov_b32 s3, {WS_REC}
s_waitcnt vmcnt(7)""")
    stamp(2)
    a(f"""
v_cndmask_b32 v{TMP+8}, 0, v{TMP+8}, vcc
v_lshrrev_b32 v166, 16, v{TMP+8}      ; count
v_and_b32 v{TMP+8}, 0xffff, v{TMP+8}  ; start
v_subrev_u32 v166, s15, v166
v_add3_u32 v{TMP+8}, v{TMP+8}, v165, v161
v_add_lshl_u32 v{TMP+8}, v{TMP+8}, s15, 2
v_sub_u32 v{TMP+11}, v166, v161
v_cmp_lt_i32 vcc, 0, v{TMP+11}
v_cmp_lt_i32 s[40:41], 12, v{TMP+11}
v_cmp_lt_i32 s[36:37], 24, v{TMP+11}
v_cndmask_b32 v{TMP+12}, v{TMP+10}, v{TMP+8}, vcc
v_cndmask_b32 v{TMP+13}, v{TMP+10}, v{TMP+8}, s[40:41]
buffer_load_dwordx4 v[{REC}:{REC+3}], v{TMP+12}, s[24:27], s3 offen
v_cndmask_b32 v{TMP+14}, v{TMP+10}, v{TMP+8}, s[36:37]
buffer_load_dwordx4 v[{REC+4}:{REC+7}], v{TMP+13}, s[24:27], s3 offen offset:48
buffer_load_dwordx4 v[{REC+8}:{REC+11}], v{TMP+14}, s[24:27], s3 offen offset:96
v_lshlrev_b32 v165, 5, v165
s_cmp_lg_u32 s15, 0
s_cbranch_scc1 K2_NOQ
s_waitcnt vmcnt(4)
v_mfma_f32_16x16x32_bf16 v[{WB+24}:{WB+27}], v[{WB}:{WB+3}], v[{WB+16}:{WB+19}], 0
v_mfma_f32_16x16x32_bf16 v[{WB+28}:{WB+31}], v[{WB+8}:{WB+11}], v[{WB+16}:{WB+19}], 0
v_mfma_f32_16x16x32_bf16 v[{WB+24}:{WB+27}], v[{WB+4}:{WB+7}], v[{WB+20}:{WB+23}], v[{WB+24}:{WB+27}]
v_mfma_f32_16x16x32_bf16 v[{WB+28}:{WB+31}], v[{WB+12}:{WB+15}], v[{WB+20}:{WB+23}], v[{WB+28}:{WB+31}]
v_mul_u32_u24 v{TMP+15}, {4*ROWB}, v163
v_lshl_add_u32 v{TMP+15}, v162, 3, v{TMP+15}
s_and_b32 s36, s34, 1
s_lshl_b32 s36, s36, 7
s_lshr_b32 s37, s34, 1
s_lshl_b32 s37, s37, 2
s_add_u32 s36, s36, s37
v_add_u32 v{TMP+16}, s36, v{TMP+15}
s_mul_i32 s37, s33, {16*ROWB}
v_add_u32 v{TMP+15}, s37, v{TMP+16}
v_cmp_gt_u32 vcc, 16, v1
""")
    for i in range(8):
        q=WB+24+i; h=WB+32+i; l=TMP+17
        a(f"""v_cvt_pk_bf16_f32 v{h}, v{q}, v{q}
v_lshlrev_b32 v{l}, 16, v{h}
v_sub_f32 v{l}, v{q}, v{l}
v_cvt_pk_bf16_f32 v{h}, v{q}, v{l}""")
    for i in range(4): a(f"ds_write_b32 v{TMP+15}, v{WB+32+i} offset:{512+i*ROWB}")
    a("s_and_saveexec_b64 s[40:41], vcc")
    for i in range(4): a(f"ds_write_b32 v{TMP+16}, v{WB+36+i} offset:{512+(48+i)*ROWB}")
    a(f"""
s_mov_b64 exec, s[40:41]
K2_NOQ:
s_waitcnt vmcnt(0)""")
    stamp(3)
    def blockC(lbl, body):
        a(f"s_cmp_eq_u64 s[{MK+16}:{MK+17}], 0\ns_cbranch_scc1 {lbl}")
        for i in range(8,12): body(i)
        a(f"{lbl}:")
    a(f"v_cmp_lt_i32 s[{MK+16}:{MK+17}], 24, v{TMP+11}")
    def unpack(i):
        a(f"""v_bfe_u32 v{CA+i}, v{REC+i}, 12, 6
v_lshl_add_u32 v{CA+i}, v{CA+i}, 2, s35""")
    for i in range(8): unpack(i)
    blockC("K2_C0", unpack)
    a(f"""
K2_RECOUNT:
v_lshl_add_u32 v{TMP}, v1, 2, s35
v_mov_b32 v{TMP+1}, 0
ds_write_b32 v{TMP}, v{TMP+1}
v_min_i32 v{TMP+11}, s39, v166
v_sub_u32 v{TMP+11}, v{TMP+11}, v161
v_mov_b32 v{TMP+2}, 1
v_cmp_lt_i32 s[40:41], s39, v166
""")
    for i in range(12):
        a(f"v_cmp_lt_i32 s[{MK+2*i}:{MK+2*i+1}], {(i&3)+12*(i>>2)}, v{TMP+11}")
    def cnt(i):
        a(f"""s_mov_b64 exec, s[{MK+2*i}:{MK+2*i+1}]
ds_add_rtn_u32 v{LR+i}, v{CA+i}, v{TMP+2}""")
    for i in range(8): cnt(i)
    blockC("K2_C1", cnt)
    a(f"""
s_mov_b64 exec, s[40:41]
v_mov_b32 v{TMP+3}, s35
ds_add_u32 v{TMP+3}, v{TMP+2} offset:252
s_mov_b64 exec, -1
s_cmp_lg_u32 s38, 0
s_cbranch_scc1 K2_NOUNP
s_mov_b32 s3, 0xffffff80
""")
    def unp2(i):
        a(f"""v_lshrrev_b32 v{XOF+i}, 11, v{REC+i}
v_and_b32 v{XOF+i}, s3, v{XOF+i}
v_and_b32 v{REC+i}, 0xfff, v{REC+i}
v_lshl_add_u32 v{REC+i}, v{REC+i}, 5, v165""")
    for i in range(8): unp2(i)
    blockC("K2_C2", unp2)
    a(f"""
K2_NOUNP:
v_lshlrev_b32 v{TMP}, 2, v1
s_waitcnt lgkmcnt(0)
s_barrier""")
    stamp(4)
    PF=TMP+4
    for r in range(0,NW,2): a(f"ds_read2st64_b32 v[{PF+2+r}:{PF+3+r}], v{TMP} offset0:{L_CNT//256+r} offset1:{L_CNT//256+r+1}")
    a(f"""
v_mov_b32 v{PF+1}, 0
v_cmp_gt_u32 vcc, 63, v1
s_mov_b32 s3, 0x03000020
v_mul_lo_u32 v{TMP+1}, v1, s3         ; PJ
s_waitcnt lgkmcnt(0)
""")
    for r in range(1,NW): a(f"v_add_u32 v{PF+2+r}, v{PF+1+r}, v{PF+2+r}")
    TOT=PF+13; OC=TMP+18; BS=TMP+19; RED=TMP+20; NPD=167
    a(f"""
s_set_gpr_idx_on s13, gpr_idx(SRC0)
s_nop 1
v_mov_b32 v{BS}, v{PF+1}
s_set_gpr_idx_off
s_nop 1
v_readlane_b32 s36, v{TOT}, 63
v_cndmask_b32 v{TOT}, 0, v{TOT}, vcc
v_add_u32 v{OC}, 7, v{TOT}
v_lshrrev_b32 v{OC}, 3, v{OC}
v_lshlrev_b32 v{NPD}, 3, v{OC}
v_sub_u32 v{NPD}, v{NPD}, v{TOT}
s_cmp_lg_u32 s38, 0
s_cbranch_scc1 K2_DENSE
v_cmp_lt_u32 vcc, {KMAX}, v{OC}
v_lshlrev_b32 v{BS}, 2, v{BS}
v_add_u32 v{TMP+2}, s35, v{TMP}
s_cbranch_vccz K2_FAST
s_mov_b32 s38, 1
s_mov_b32 s39, 12
s_barrier
s_branch K2_RECOUNT
K2_DENSE:
v_mov_b32 v{RED}, v{OC}
""")
    scan_add(a,RED)
    a(f"""
s_nop 0
v_readlane_b32 s37, v{RED}, 63
v_sub_u32 v{RED}, v{RED}, v{OC}
v_lshl_add_u32 v{BS}, v{RED}, 3, v{BS}
v_lshlrev_b32 v{BS}, 2, v{BS}
v_add_u32 v{TMP+2}, s35, v{TMP}
ds_write_b32 v{TMP+2}, v{BS} offset:{L_BASE-L_CNT}
v_and_b32 v{TMP+1}, 0xffff0000, v{TMP+1}
s_mov_b32 s43, s13
K2_DL:
v_cmp_lt_u32 vcc, s43, v{OC}
s_cbranch_vccz K2_DLE
v_add_u32 v{TMP+3}, s43, v{RED}
v_lshl_or_b32 v{TMP+21}, v{TMP+3}, 5, v{TMP+1}
v_lshlrev_b32 v{TMP+3}, 2, v{TMP+3}
s_mov_b64 exec, vcc
ds_write_b32 v{TMP+3}, v{TMP+21} offset:{L_PERM}
s_mov_b64 exec, -1
s_add_u32 s43, s43, {NW}
s_branch K2_DL
K2_DLE:
s_mov_b32 s98, 32                     ; sK
s_mov_b32 s99, 0
v_mov_b32 v{TMP+22}, {L_XO}
s_branch K2_SCAT
K2_FAST:
ds_write_b32 v{TMP+2}, v{BS} offset:{L_BASE-L_CNT}
s_mov_b32 s98, {ROWK}
s_mov_b32 s99, 8
s_lshl_b32 s3, s35, 3
s_sub_u32 s3, {L_XO}, s3
v_mov_b32 v{TMP+22}, s3
K2_SCAT:
""")
    def look(i):
        a(f"""s_mov_b64 exec, s[{MK+2*i}:{MK+2*i+1}]
ds_read_b32 v{B4+i}, v{CA+i} offset:{L_BASE-L_CNT}""")
    for i in range(8): look(i)
    blockC("K2_C3", look)
    a(f"""
s_mov_b64 exec, -1
s_cmp_lg_u32 s38, 0
s_cbranch_scc1 K2_PERMDONE
s_mov_b32 s43, s13
K2_PL:
v_min_u32 v{RED}, s43, v{OC}
v_lshl_or_b32 v{RED}, v{OC}, 16, v{RED}
v_cmp_lt_u32 vcc, s43, v{OC}
""")
    scan_add(a,RED)
    a(f"""
s_mul_i32 s3, s43, {ROWK}
v_readlane_b32 s37, v{RED}, 63
v_mbcnt_lo_u32_b32 v{TMP+3}, vcc_lo, 0
v_mbcnt_hi_u32_b32 v{TMP+3}, vcc_hi, v{TMP+3}
v_add_u32 v{TMP+21}, s3, v{TMP+1}
s_and_b32 s3, s37, 0xffff
s_lshr_b32 s37, s37, 16
v_add_lshl_u32 v{TMP+3}, v{TMP+3}, s3, 2
s_mov_b64 exec, vcc
ds_write_b32 v{TMP+3}, v{TMP+21} offset:{L_PERM}
s_mov_b64 exec, -1
s_add_u32 s43, s43, {NW}
v_cmp_lt_u32 vcc, s43, v{OC}
s_cbranch_vccnz K2_PL
K2_PERMDONE:
s_waitcnt lgkmcnt(0)
""")
    def scat(i):
        a(f"""s_mov_b64 exec, s[{MK+2*i}:{MK+2*i+1}]
v_lshl_add_u32 v{B4+i}, v{LR+i}, 2, v{B4+i}
v_mad_u32_u24 v{LR+i}, v{CA+i}, s99, v{TMP+22}
v_and_or_b32 v{LR+i}, v{B4+i}, 28, v{LR+i}
v_lshrrev_b32 v{B4+i}, 5, v{B4+i}
v_mad_u32_u24 v{B4+i}, v{B4+i}, s98, v{LR+i}
ds_write2st64_b32 v{B4+i}, v{XOF+i}, v{REC+i} offset0:0 offset1:{GRIDB//256}""")
    for i in range(8): scat(i)
    blockC("K2_C4", scat)
    a(f"""
s_mov_b64 exec, -1
s_cmp_lg_u32 s15, 0
s_cbranch_scc1 K2_WDONE
v_lshlrev_b32 v{TMP}, 4, v1
v_add_u32 v{TMP}, {L_STG}, v{TMP}
""")
    for f in range(10): a(f"ds_read_b128 v[{WB+4*f}:{WB+4*f+3}], v{TMP} offset:{f*1024}")
    a(f"""
K2_WDONE:
s_add_u32 s37, s37, 3
s_lshr_b32 s37, s37, 2                ; ngroups
s_lshl_b32 s3, s13, 4
s_add_u32 s3, s3, {L_PERM}
v_lshrrev_b32 v{TMP+1}, 4, v1
v_lshl_add_u32 v{PA1}, v{TMP+1}, 2, s3
v_lshrrev_b32 v{TMP+1}, 5, v1
v_lshl_add_u32 v{PA3}, v{TMP+1}, 3, s3
s_add_u32 s43, s42, 1024
s_add_u32 s44, s42, 2048
s_add_u32 s45, s42, 3072
s_add_u32 s46, s42, 4096
s_mov_b32 s52, s13
s_waitcnt lgkmcnt(0)
s_barrier""")
    stamp(5)
    GS=NW*16
    SD="dst_sel:DWORD dst_unused:UNUSED_PAD"
    def idx_addr():
        return [f"v_add_u32_sdwa v{AXA}, v{P1}, v{CX} {SD} src0_sel:WORD_0 src1_sel:DWORD",
                f"v_add_u32_sdwa v{AEA}, v{P1}, v{CE} {SD} src0_sel:WORD_0 src1_sel:DWORD"]
    def idx_read():
        return [f"ds_read_b128 v[{XOr}:{XOr+3}], v{AXA}", f"ds_read_b32 v{EOr}, v{AEA}"]
    def sy_calc():
        return [f"v_add_u32_sdwa v{SY}, v{P3}, v{N8} {SD} src0_sel:WORD_1 src1_sel:DWORD",
                f"v_add_u32_sdwa v{SY+1}, v{P3+1}, v{N8} {SD} src0_sel:WORD_1 src1_sel:DWORD"]
    def q_ax_read():
        l=[f"ds_read_b128 v[{AE}:{AE+3}], v{AR+4}",
           f"ds_read_b32 v{QB}, v{SY} offset:512", f"ds_read_b32 v{QB+1}, v{SY+1} offset:512",
           f"ds_read_b32 v{QB+2}, v{SY} offset:516", f"ds_read_b32 v{QB+3}, v{SY+1} offset:516"]
        l+=[f"ds_read_b128 v[{AX+4*s}:{AX+4*s+3}], v{AR+s}" for s in range(4)]
        return l
    def issue_loads(lbl):
        a(f"s_cmp_ge_u32 s52, s37\ns_cbranch_scc1 {lbl}")
        a(f"""s_mov_b32 m0, s46
v_add_u32 v{EOr}, v{EOr}, v{CDE}
{"" if opt.get('noe') else f"buffer_load_dwordx4 v{EOr}, s[20:23], 0 offen lds {opt.get('epol','')}"}""")
        for q in range(4):
            a(f"""s_mov_b32 m0, s{42+q}
v_xad_u32 v{XOr+q}, v{CDX}, {16*q}, v{XOr+q}
{"" if opt.get('nox') else f"buffer_load_dwordx4 v{XOr+q}, s[16:19], 0 offen lds"}""")
        a(f"{lbl}:\ns_add_u32 s52, s52, {NW}")
    W=lambda s,t: f"v[{WB+4*(2*s+t)}:{WB+4*(2*s+t)+3}]"
    Dr=lambda t: (D0 if t==0 else D1)
    Dt=lambda t: f"v[{Dr(t)}:{Dr(t)+15}]"
    MF="v_mfma_f32_32x32x16_bf16"
    def mfmas(t):
        l=[f"{MF} {Dt(t)}, v[{AE}:{AE+3}], {W(4,t)}, 0",
           f"{MF} {Dt(t)}, v[{QB+4}:{QB+7}], v[{QB+2*t}:{QB+2*t+3}], {Dt(t)}"]
        l+=[f"{MF} {Dt(t)}, v[{AX+4*s}:{AX+4*s+3}], {W(s,t)}, {Dt(t)}" for s in range(4)]
        return l
    def P(r): return f"v[{r}:{r+1}]"
    def scale(t): return [f"v_pk_mul_f32 {P(T+2*i)}, {P(Dr(t)+2*i)}, s[70:71]" for i in range(8)]
    def exps(): return [f"v_exp_f32 v{T+i}, v{T+i}" for i in range(16)]
    def rcps(): return [f"v_rcp_f32 v{NP+4*o+2+i}, v{NP+4*o+2+i}" for o in range(2) for i in range(2)]
    def flush(tile):
        l=[f"v_mul_f32 v{NP+4*o}, v{NP+4*o}, v{NP+4*o+2}" for o in range(2)]
        l+=[f"v_fmac_f32 v{NP+4*o}, v{NP+4*o+1}, v{NP+4*o+3}" for o in range(2)]
        l+=[f"v_cvt_f64_f32 {P(FT+2*o)}, v{NP+4*o}" for o in range(2)]
        l+=[f"ds_add_f64 v{SX+o}, {P(FT+2*o)} offset:{256*tile}" for o in range(2)]
        return l
    def pkphase(t):
        seq=[]
        for o in range(2):
            z=Dr(t)+8*o; tt=T+8*o; p=P(PT+2*o); Nn=P(NP+4*o); Pq=P(NP+4*o+2)
            A_,B_,C_,D_=[P(z+2*i) for i in range(4)]
            tA,tB,tC,tD=[P(tt+2*i) for i in range(4)]
            s=[[f"v_pk_fma_f32 {P(tt+2*i)}, {P(tt+2*i)}, s[96:97], s[96:97] clamp" for i in range(4)],
               [f"v_pk_mul_f32 {p}, {tA}, {tB}", f"v_pk_mul_f32 {A_}, {A_}, {tB}", f"v_pk_mul_f32 {C_}, {C_}, {tD}"],
               [f"v_pk_fma_f32 {A_}, {B_}, {tA}, {A_}", f"v_pk_fma_f32 {C_}, {D_}, {tC}, {C_}", f"v_pk_mul_f32 {B_}, {tC}, {tD}"],
               [f"v_pk_mul_f32 {A_}, {A_}, {B_}", f"v_pk_mul_f32 {Pq}, {p}, {B_}"],
               [f"v_pk_fma_f32 {Nn}, {C_}, {p}, {A_}"]]
            seq.append(s)
        l=[]
        for st in range(5):
            for o in range(2): l+=seq[o][st]
        return l
    def weave(mf, tr, rest):
        out=[]; tr=list(tr)
        for m in mf:
            out.append(m); out+=tr[:3]; tr=tr[3:]
        return out+tr+rest
    emit=lambda l: [a(x) for x in l]
    NOV=opt.get('novalu')
    a(f"""
s_cmp_ge_u32 s52, s37
s_cbranch_scc1 K2_CORR
ds_read_b32 v{P1}, v{PA1}
ds_read_b64 v[{P3}:{P3+1}], v{PA3}
s_waitcnt lgkmcnt(0)""")
    emit(idx_addr()); emit(idx_read()); emit(sy_calc())
    a(f"ds_read_b32 v{P1}, v{PA1} offset:{GS}\nds_read_b64 v[{P3}:{P3+1}], v{PA3} offset:{GS}\ns_waitcnt lgkmcnt(0)")
    issue_loads("K2_IL0")
    emit(idx_addr()); emit(idx_read())
    a(f"ds_read_b32 v{P1}, v{PA1} offset:{2*GS}")
    a(f"v_add_u32 v{PA1}, {3*GS}, v{PA1}\nv_add_u32 v{PA3}, {2*GS}, v{PA3}")
    a(f"""
K2_CORR:
v_and_b32 v{T}, 31, v1
v_lshlrev_b32 v{T}, 3, v{T}
v_lshrrev_b32 v{T+1}, 5, v1
v_lshl_add_u32 v{T}, v{T+1}, 2, v{T}
s_mul_i32 s3, s13, {ROWB}
v_add_u32 v{T}, s3, v{T}              ; q address
v_lshl_add_u32 v{T+1}, v1, 3, s3
v_cvt_f32_u32 v{T+2}, v{NPD}
v_mul_f32 v{T+2}, 0xce800000, v{T+2}  ; -npad * 2^30
s_mov_b32 s47, 0xffff0000
""")
    for i in range(5): a(f"ds_read_b32 v{D0+i}, v{T} offset:{512+12*i*ROWB}")
    for i in range(5): a(f"s_add_u32 s3, s13, {12*i}\ns_nop 0\nv_readlane_b32 s{53+i}, v{T+2}, s3")
    a("s_waitcnt lgkmcnt(0)")
    for i in range(5): a(f"v_lshlrev_b32 v{D0+5+i}, 16, v{D0+i}\nv_and_b32 v{D0+i}, s47, v{D0+i}\nv_add_f32 v{D0+i}, v{D0+i}, v{D0+5+i}")
    for i in range(5): a(f"v_mul_f32 v{D0+5+i}, s70, v{D0+i}")
    for i in range(5): a(f"v_exp_f32 v{D0+5+i}, v{D0+5+i}")
    for i in range(5): a(f"v_add_f32 v{D0+5+i}, 1.0, v{D0+5+i}")
    for i in range(5): a(f"v_rcp_f32 v{D0+5+i}, v{D0+5+i}")
    for i in range(5): a(f"v_mul_f32 v{D0+i}, s{53+i}, v{D0+i}")
    for i in range(5): a(f"v_mul_f32 v{D0+i}, v{D0+i}, v{D0+5+i}")
    for i in range(5): a(f"v_cvt_f64_f32 {P(D1+2*i)}, v{D0+i}")
    for i in range(4): a(f"ds_add_f64 v{T+1}, {P(D1+2*i)} offset:{12*i*ROWB}")
    a(f"""
s_cmp_lg_u32 s13, 0
s_cbranch_scc1 K2_CORR2
ds_add_f64 v{T+1}, {P(D1+8)} offset:{48*ROWB}
K2_CORR2:
s_cmp_ge_u32 s13, s37
s_cbranch_scc1 K2_LOOPEND
v_mov_b32 v{NP}, 0
v_mov_b32 v{NP+1}, 0
v_mov_b32 v{NP+2}, 1.0
v_mov_b32 v{NP+3}, 1.0
v_mov_b32 v{NP+4}, 0
v_mov_b32 v{NP+5}, 0
v_mov_b32 v{NP+6}, 1.0
v_mov_b32 v{NP+7}, 1.0
v_mov_b32 v{SX}, v{SY}
v_mov_b32 v{SX+1}, v{SY+1}
s_mov_b32 s48, s13
s_waitcnt vmcnt(0)""")
    stamp(6)
    emit(q_ax_read())
    a("s_waitcnt lgkmcnt(0)")
    issue_loads("K2_IL1")
    emit(mfmas(0))
    a("s_nop 11")
    emit(scale(0))
    a("K2_LOOP:")
    restA=flush(1)+[f"v_mov_b32 v{SX}, v{SY}", f"v_mov_b32 v{SX+1}, v{SY+1}"]+sy_calc()+idx_addr()+idx_read()+[
        f"ds_read_b32 v{P1}, v{PA1}", f"ds_read_b64 v[{P3}:{P3+1}], v{PA3}",
        f"v_add_u32 v{PA1}, {GS}, v{PA1}", f"v_add_u32 v{PA3}, {GS}, v{PA3}"]
    emit(weave(mfmas(1), [] if NOV else rcps()+exps(), restA))
    a("s_waitcnt vmcnt(0)")
    emit(q_ax_read())
    if not NOV: emit(pkphase(0)); emit(scale(1))
    else: a("s_nop 7")
    a("s_waitcnt lgkmcnt(0)")
    issue_loads("K2_IL2")
    emit(weave(mfmas(0), [] if NOV else rcps()+exps(), flush(0)))
    if not NOV: emit(pkphase(1)); emit(scale(0))
    else: a("s_nop 7")
    a(f"""
s_add_u32 s48, s48, {NW}
s_cmp_lt_u32 s48, s37
s_cbranch_scc1 K2_LOOP""")
    emit(rcps()); a("s_nop 0"); emit(flush(1))
    a(f"""
K2_LOOPEND:
s_waitcnt vmcnt(0)
s_cmp_eq_u32 s36, 0
s_cbranch_scc1 K2_EPI
s_add_u32 s15, s15, s39
s_waitcnt lgkmcnt(0)
s_barrier
s_branch K2_ROUND
K2_EPI:""")
    stamp(7)
    XA=36; WU=52; GB=68
    a(f"""
buffer_load_dwordx4 v[{XA}:{XA+3}], v164, s[16:19], s68 offen
buffer_load_dwordx4 v[{XA+4}:{XA+7}], v164, s[16:19], s68 offen offset:64
buffer_load_dwordx4 v[{XA+8}:{XA+11}], v164, s[16:19], s69 offen
buffer_load_dwordx4 v[{XA+12}:{XA+15}], v164, s[16:19], s69 offen offset:64
v_lshlrev_b32 v2, 4, v1
s_lshl_b32 s36, s34, 10
""")
    for s in range(4):
        a(f"s_add_u32 s37, s36, {WS_WU+4096*s}\nbuffer_load_dwordx4 v[{WU+4*s}:{WU+4*s+3}], v2, s[24:27], s37 offen")
    a(f"""
s_mul_i32 s3, s13, {ROWB}
v_lshl_add_u32 v3, v1, 3, s3
s_mul_i32 s3, s13, {AGGB_STRIDE}
s_add_u32 s3, s3, {L_STG}
v_lshl_add_u32 v4, v1, 1, s3
v_mul_u32_u24 v5, {AGGB_STRIDE}, v162
v_lshl_add_u32 v5, v163, 4, v5
v_add_u32 v5, {L_STG}, v5
s_mul_i32 s3, s33, {16*AGGB_STRIDE}
v_add_u32 v6, s3, v5
v_lshlrev_b32 v7, 15, v162
v_lshl_add_u32 v7, v163, 3, v7
s_lshl_b32 s36, s34, 5
s_add_u32 s68, s68, s36
s_add_u32 s69, s69, s36
s_mov_b32 s3, 0xffff0000
s_waitcnt lgkmcnt(0)
s_barrier""")
    stamp(8)
    for i in range(5): a(f"ds_read_b64 {P(D0+2*i)}, v3 offset:{12*i*ROWB}")
    for i in range(5): a(f"s_waitcnt lgkmcnt({4-i if not DBG else 0})\nv_cvt_f32_f64 v{D1+i}, {P(D0+2*i)}")
    for i in range(5): a(f"v_mul_f32 v{D1+i}, s96, v{D1+i}")
    for i in range(5): a(f"v_cvt_pk_bf16_f32 v{D1+i}, v{D1+i}, v{D1+i}")
    for i in range(5): a(f"ds_write_b16 v4, v{D1+i} offset:{12*i*AGGB_STRIDE}")
    M16="v_mfma_f32_16x16x32_bf16"
    a(f"""
s_waitcnt vmcnt(0)
{M16} v[{D0}:{D0+3}], v[{WU}:{WU+3}], v[{XA}:{XA+3}], 0
{M16} v[{D0+4}:{D0+7}], v[{WU}:{WU+3}], v[{XA+8}:{XA+11}], 0
{M16} v[{D0}:{D0+3}], v[{WU+4}:{WU+7}], v[{XA+4}:{XA+7}], v[{D0}:{D0+3}]
{M16} v[{D0+4}:{D0+7}], v[{WU+4}:{WU+7}], v[{XA+12}:{XA+15}], v[{D0+4}:{D0+7}]
s_waitcnt lgkmcnt(0)
s_barrier
ds_read_b128 v[{GB}:{GB+3}], v6
ds_read_b128 v[{GB+4}:{GB+7}], v5 offset:{48*AGGB_STRIDE}
ds_read_b128 v[{GB+8}:{GB+11}], v6 offset:64
ds_read_b128 v[{GB+12}:{GB+15}], v5 offset:{48*AGGB_STRIDE+64}
s_waitcnt lgkmcnt(2)
{M16} v[{D0}:{D0+3}], v[{WU+8}:{WU+11}], v[{GB}:{GB+3}], v[{D0}:{D0+3}]
{M16} v[{D0+4}:{D0+7}], v[{WU+8}:{WU+11}], v[{GB+4}:{GB+7}], v[{D0+4}:{D0+7}]
s_waitcnt lgkmcnt(0)
{M16} v[{D0}:{D0+3}], v[{WU+12}:{WU+15}], v[{GB+8}:{GB+11}], v[{D0}:{D0+3}]
{M16} v[{D0+4}:{D0+7}], v[{WU+12}:{WU+15}], v[{GB+12}:{GB+15}], v[{D0+4}:{D0+7}]
s_nop 7
""")
    for i in range(4): a(f"v_cvt_pk_bf16_f32 v{D1+i}, v{D0+2*i}, v{D0+2*i+1}")
    for i in range(4): a(f"v_lshlrev_b32 v{D0+2*i}, 16, v{D1+i}\nv_and_b32 v{D0+2*i+1}, s3, v{D1+i}")
    for i in range(8): a(f"v_mul_f32 v{D0+8+i}, s70, v{D0+i}")
    for i in range(8): a(f"v_exp_f32 v{D0+8+i}, v{D0+8+i}")
    for i in range(8): a(f"v_add_f32 v{D0+8+i}, 1.0, v{D0+8+i}")
    for i in range(8): a(f"v_rcp_f32 v{D0+8+i}, v{D0+8+i}")
    for i in range(8): a(f"v_mul_f32 v{D0+8+i}, v{D0+i}, v{D0+8+i}")
    for i in range(4): a(f"v_cvt_pk_bf16_f32 v{D1+i}, v{D0+8+2*i}, v{D0+9+2*i}")
    a(f"""
buffer_store_dwordx2 v[{D1}:{D1+1}], v7, s[28:31], s68 offen
s_cmp_ge_u32 s13, 4
s_cbranch_scc1 K2_NOST
buffer_store_dwordx2 v[{D1+2}:{D1+3}], v7, s[28:31], s69 offen
K2_NOST:""")
    if DBG:
        a("s_waitcnt vmcnt(0)"); stamp(9,True)
        a("s_mov_b32 s26, 0x10000000\ns_lshl_b32 s3, s2, 4\ns_add_u32 s3, s3, s13\ns_lshl_b32 s3, s3, 7\ns_add_u32 s3, s3, 0x800000\nv_mov_b32 v2, 0")
        for i in range(5):
            for j in range(4): a(f"v_mov_b32 v{4+j}, s{72+4*i+j}")
            a(f"buffer_store_dwordx4 v[4:7], v2, s[24:27], s3 offen offset:{16*i}\ns_nop 1")
    a("K2_END:")
    return a.txt(), 168

def kd(name, nv):
    return f""".amdhsa_kernel {name}
  .amdhsa_next_free_vgpr {nv}
  .amdhsa_next_free_sgpr 102
  .amdhsa_accum_offset {(nv+3)//4*4}
  .amdhsa_group_segment_fixed_size 0
  .amdhsa_kernarg_size 72
  .amdhsa_user_sgpr_count 2
  .amdhsa_user_sgpr_kernarg_segment_ptr 1
  .amdhsa_system_sgpr_workgroup_id_x 1
  .amdhsa_float_denorm_mode_32 3
.end_amdhsa_kernel
"""
def build(opt):
    b1,n1=k1(opt); b2,n2=k2(opt)
    s=f"""; MPNN edge-MLP: K1 partitions edges by destination bucket (and re-lays-out weights), K2 does everything else.
; @launch kernel=mpnn_part_kernel grid=({K1_GRID},1,1) block=({K1_BLOCK},1,1) lds={K1_LDS}
; @launch kernel=mpnn_main_kernel grid=(256,1,1) block=({NW*64},1,1) lds={K2_LDS}
.amdgcn_target "amdgcn-amd-amdhsa--gfx950"
.text
.globl mpnn_part_kernel
.p2align 8
.type mpnn_part_kernel,@function
mpnn_part_kernel:
{b1}    s_endpgm
.globl mpnn_main_kernel
.p2align 8
.type mpnn_main_kernel,@function
mpnn_main_kernel:
{b2}    s_endpgm
.section .rodata,"a"
.p2align 6
{kd('mpnn_part_kernel',n1)}.p2align 6
{kd('mpnn_main_kernel',n2)}"""
    return s
if __name__=="__main__":
    out=sys.argv[1] if len(sys.argv)>1 else "standalone__mpnn_edge_mlp__graph.s"
    opt=dict(kv.split("=",1) for kv in sys.argv[2:])
    open(out,"w").write(build(opt))
    print("SWZ",SWZ,"K2_LDS",K2_LDS)
```

```python
import sys
N=12500; E=800000; CH=3200; NCH=250
WS_WM=0; WS_W2=10240; WS_WU=18432; WS_TAB=65536; WS_REC=524288
WS_SIZE=WS_REC+E*4+4096

class A:
    def __init__(s): s.l=[]
    def __call__(s, txt):
        for ln in txt.strip("\n").split("\n"):
            ln=ln.strip()
            if ln: s.l.append(("" if ln.endswith(":") else "    ")+ln)
    def txt(s): return "\n".join(s.l)+"\n"

def srd(a,d,b,n):
    a(f"""s_mov_b32 s{d}, s{b}
s_and_b32 s{d+1}, s{b+1}, 0xffff
s_mov_b32 s{d+2}, {n}
s_mov_b32 s{d+3}, 0x20000""")

def scan_add(a, v):
    for sh in (1,2,4,8):
        a(f"s_nop 1\nv_add_u32_dpp v{v}, v{v}, v{v} row_shr:{sh} row_mask:0xf bank_mask:0xf bound_ctrl:0")
    a(f"s_nop 1\nv_add_u32_dpp v{v}, v{v}, v{v} row_bcast:15 row_mask:0xa bank_mask:0xf")
    a(f"s_nop 1\nv_add_u32_dpp v{v}, v{v}, v{v} row_bcast:31 row_mask:0xc bank_mask:0xf")

K1_BLOCK=832
K1_GRID=256
K1_STAGE=1024
K1_LDS=1024+CH*4
def xpf(a,opt):
    if not opt.get('xpf'): return
    srd(a,36,32,N*128)
    a(f"""s_lshr_b32 s34, s2, 3
s_mul_i32 s34, s34, {391*128}
v_lshlrev_b32 v23, 7, v0
v_cmp_gt_u32 vcc, 391, v0
v_mov_b32 v22, 0x7ffffff0
s_nop 0
v_cndmask_b32 v23, v22, v23, vcc
buffer_load_dword v23, v23, s[36:39], s34 offen""")
def leak(st, base):
    return f"""s_waitcnt vmcnt(0)
s_memrealtime s[{st+2}:{st+3}]
s_mov_b32 s26, 0x10000000
s_lshl_b32 s3, s2, 2
s_add_u32 s3, s3, {0x900000+base}
s_waitcnt lgkmcnt(0)
v_mov_b32 v2, 0
v_mov_b32 v3, s{st}
v_mov_b32 v4, s{st+2}
buffer_atomic_umin v3, v2, s[24:27], s3 offen
buffer_atomic_umax v4, v2, s[24:27], s3 offen offset:1024
"""
def k1(opt):
    a=A()
    LEAK1=leak(40,0).replace("buffer_atomic_umin","buffer_store_dword").replace("buffer_atomic_umax","buffer_store_dword")
    a(f"""
s_cmp_ge_u32 s2, {K1_GRID}
s_cbranch_scc1 K1_END
{"s_memrealtime s[40:41]" if opt.get('leak') else ""}
s_load_dwordx4 s[4:7], s[0:1], 16
s_load_dwordx4 s[8:11], s[0:1], 32
s_load_dwordx2 s[12:13], s[0:1], 64
s_load_dwordx2 s[32:33], s[0:1], 0
v_lshrrev_b32 v2, 6, v0
v_and_b32 v3, 63, v0
v_readfirstlane_b32 s14, v2
s_cmp_ge_u32 s2, {NCH}
s_cbranch_scc1 K1_WPREP
v_lshlrev_b32 v1, 4, v0
v_lshlrev_b32 v2, 2, v0
v_mov_b32 v20, 0
v_mov_b32 v21, 1
v_cmp_gt_u32 vcc, 256, v0
s_and_saveexec_b64 s[30:31], vcc
ds_write_b32 v2, v20
s_mov_b64 exec, s[30:31]
s_mul_i32 s3, s2, {CH*4}
v_cmp_gt_u32 vcc, {CH//4}, v0
s_waitcnt lgkmcnt(0)
""")
    srd(a,16,4,E*4); srd(a,20,6,E*4); srd(a,24,12,WS_SIZE)
    a(f"""
s_and_b64 exec, exec, vcc
buffer_load_dwordx4 v[4:7], v1, s[20:23], s3 offen nt
buffer_load_dwordx4 v[8:11], v1, s[16:19], s3 offen nt
""")
    xpf(a,opt)
    a(f"""
s_barrier
s_waitcnt vmcnt({2 if opt.get('xpf') else 1})
""")
    for i in range(4):
        a(f"""v_lshlrev_b32 v{12+i}, 2, v{4+i}
v_and_b32 v{12+i}, 0x3fc, v{12+i}
ds_add_rtn_u32 v{16+i}, v{12+i}, v21""")
    for i in range(4):
        a(f"""v_lshrrev_b32 v{4+i}, 8, v{4+i}
v_add_u32 v22, {i}, v2
v_lshl_or_b32 v{4+i}, v{4+i}, 12, v22""")
    a(f"s_waitcnt vmcnt({1 if opt.get('xpf') else 0})")
    for i in range(4):
        a(f"v_lshl_or_b32 v{4+i}, v{8+i}, 18, v{4+i}")
    a(f"""
s_waitcnt lgkmcnt(0)
s_barrier
s_cmp_lg_u32 s14, 0
s_cbranch_scc1 K1_SKIPSCAN
ds_read_b128 v[24:27], v1
s_waitcnt lgkmcnt(0)
v_add_u32 v28, v24, v25
v_add_u32 v29, v28, v26
v_add_u32 v30, v29, v27
v_mov_b32 v31, v30
""")
    scan_add(a,31)
    a(f"""
v_sub_u32 v32, v31, v30
v_add_u32 v33, v32, v24
v_add_u32 v34, v32, v28
v_add_u32 v35, v32, v29
ds_write_b128 v1, v[32:35]
v_lshl_or_b32 v36, v24, 16, v32
v_lshl_or_b32 v37, v25, 16, v33
v_lshl_or_b32 v38, v26, 16, v34
v_lshl_or_b32 v39, v27, 16, v35
s_lshl_b32 s15, s2, 10
s_add_u32 s15, s15, {WS_TAB}
buffer_store_dwordx4 v[36:39], v1, s[24:27], s15 offen
s_waitcnt lgkmcnt(0)
K1_SKIPSCAN:
s_barrier
""")
    for i in range(4): a(f"ds_read_b32 v{24+i}, v{12+i}")
    for i in range(4):
        a(f"""s_waitcnt lgkmcnt({3-i})
v_add_lshl_u32 v{24+i}, v{24+i}, v{16+i}, 2""")
    for i in range(4):
        a(f"ds_write_b32 v{24+i}, v{4+i} offset:{K1_STAGE}")
    a(f"""
s_waitcnt lgkmcnt(0)
s_barrier
ds_read_b128 v[24:27], v1 offset:{K1_STAGE}
s_add_u32 s3, s3, {WS_REC}
s_waitcnt lgkmcnt(0)
buffer_store_dwordx4 v[24:27], v1, s[24:27], s3 offen
{LEAK1 if opt.get('leak') else ""}
s_endpgm
K1_WPREP:
s_waitcnt lgkmcnt(0)
""")
    xpf(a,opt)
    a(f"""
s_sub_u32 s15, s2, {NCH}
s_mul_i32 s15, s15, 13
s_add_u32 s15, s15, s14
s_cmp_ge_u32 s15, 34
s_cbranch_scc1 K1_END
s_waitcnt lgkmcnt(0)
""")
    srd(a,24,12,WS_SIZE)
    a(f"""
s_mov_b32 s16, s8
s_and_b32 s17, s9, 0xffff
s_mov_b32 s18, {144*128}
s_mov_b32 s19, 0x20000
s_cmp_ge_u32 s15, 10
s_cbranch_scc1 K1_W16
s_lshr_b32 s20, s15, 1
s_and_b32 s21, s15, 1
s_lshl_b32 s22, s20, 4
s_cmp_eq_u32 s20, 4
s_cselect_b32 s22, 128, s22
s_lshl_b32 s22, s22, 7
s_lshl_b32 s21, s21, 6
s_add_u32 s22, s22, s21
v_and_b32 v4, 31, v3
v_lshrrev_b32 v5, 5, v3
s_branch K1_WLOAD
K1_W16:
s_sub_u32 s20, s15, 10
s_mov_b32 s23, 64
s_cmp_ge_u32 s15, 18
s_cbranch_scc0 K1_W16B
s_sub_u32 s20, s15, 18
s_mov_b32 s23, 0
s_mov_b32 s16, s10
s_and_b32 s17, s11, 0xffff
s_mov_b32 s18, {128*128}
K1_W16B:
s_lshr_b32 s21, s20, 2
s_lshl_b32 s21, s21, 5
s_add_u32 s22, s21, s23
s_lshl_b32 s22, s22, 7
s_and_b32 s21, s20, 3
s_lshl_b32 s21, s21, 5
s_add_u32 s22, s22, s21
v_and_b32 v4, 15, v3
v_lshrrev_b32 v5, 4, v3
K1_WLOAD:
v_lshlrev_b32 v4, 1, v4
v_lshl_add_u32 v4, v5, 10, v4
""")
    for j in range(8):
        a(f"buffer_load_ushort v{8+j}, v4, s[16:19], s22 offen offset:{j*128}")
    a("v_lshlrev_b32 v6, 4, v3\ns_lshl_b32 s15, s15, 10\ns_waitcnt vmcnt(0)")
    for j in range(4):
        a(f"v_lshl_or_b32 v{16+j}, v{9+2*j}, 16, v{8+2*j}")
    a("""buffer_store_dwordx4 v[16:19], v6, s[24:27], s15 offen
K1_END:""")
    return a.txt(), 40

NW=12
ROWB=768; NROW=52
KMAX=14; ROWK=49*32
GRIDB=22016; DSLOT=KMAX*ROWK
L_CNT=NROW*ROWB
L_BASE=L_CNT+NW*256
L_PERM=L_BASE+NW*256
L_XO=L_PERM+4096
L_EO=L_XO+GRIDB
L_STG=L_EO+GRIDB
STGW=5120
K2_LDS=L_STG+NW*STGW
AGGB_STRIDE=144
XPAD=0x7fffff80
EPAD=0x7fffffe0
PERM_DUMMY=DSLOT|((49*ROWB)<<16)
assert GRIDB%256==0 and L_XO%32==0 and DSLOT+32<=GRIDB and K2_LDS<=163840
SWZ=4

def k2(opt):
    a=A()
    DBG=opt.get('dbg')
    def stamp(i, wait=False):
        if DBG:
            a(f"s_memrealtime s[{72+2*i}:{73+2*i}]")
            if i==5: a("s_memtime s[92:93]")
            if i==8: a("s_memtime s[94:95]")
            if wait: a("s_waitcnt lgkmcnt(0)")
    PA1=2; PA3=3; CX=4; CE=5; N8=6; CDX=7; CDE=8; AR=9; P1=14; EOr=15; P3=16; SX=18; SY=20; AXA=22; AEA=23
    XOr=24; QB=28; AX=36; AE=52; NP=56; T=64; PT=80; FT=84; D0=88; D1=104; WB=120
    REC=36; XOF=48; CA=60; LR=72; B4=84; TMP=96
    MK=44
    a(f"""
s_cmp_ge_u32 s2, 256
s_cbranch_scc1 K2_END""")
    stamp(0)
    if opt.get('leak'): a("s_memrealtime s[72:73]")
    a(f"""
s_load_dwordx4 s[4:7], s[0:1], 0
s_load_dwordx2 s[8:9], s[0:1], 48
s_load_dwordx2 s[10:11], s[0:1], 64
s_and_b32 s40, s2, 7
s_lshl_b32 s12, s40, 5
s_lshr_b32 s41, s2, 3
s_or_b32 s12, s12, s41
v_lshrrev_b32 v{TMP}, 6, v0
v_and_b32 v1, 63, v0
v_readfirstlane_b32 s13, v{TMP}
s_mov_b32 s15, 0
v_mul_u32_u24 v{TMP+1}, 43, v1
v_lshrrev_b32 v{TMP+1}, 7, v{TMP+1}   ; l/3
v_mul_u32_u24 v{TMP+2}, 3, v{TMP+1}
v_sub_u32 v{TMP+2}, v1, v{TMP+2}
v_lshlrev_b32 v161, 2, v{TMP+2}       ; v161 = 4*sub
s_mul_i32 s3, s13, 21
v_add_u32 v160, s3, v{TMP+1}          ; v160 = segment
v_cmp_gt_u32 vcc, 63, v1
v_mov_b32 v{TMP+3}, 255
v_lshlrev_b32 v{TMP+4}, 4, v1         ; lane*16
v_cndmask_b32 v160, v{TMP+3}, v160, vcc
v_lshlrev_b32 v{TMP+5}, 10, v160
s_lshl_b32 s14, s12, 2
s_add_u32 s14, s14, {WS_TAB}
; record warm-up addresses: tid<192: chunk = 8*(wg>>3) + tid/24, line = tid%24
v_mul_u32_u24 v{TMP+6}, 171, v0
v_lshrrev_b32 v{TMP+6}, 12, v{TMP+6}
v_mul_u32_u24 v{TMP+7}, 24, v{TMP+6}
v_sub_u32 v{TMP+7}, v0, v{TMP+7}
v_mul_u32_u24 v{TMP+6}, {CH*4}, v{TMP+6}
v_lshl_add_u32 v{TMP+6}, v{TMP+7}, 7, v{TMP+6}
s_mul_i32 s41, s41, {8*CH*4}
s_mul_i32 s40, s40, 1600
s_add_u32 s41, s41, s40
s_add_u32 s41, s41, {WS_REC-640}
s_waitcnt lgkmcnt(0)""")
    stamp(1)
    srd(a,24,10,WS_SIZE)
    a(f"""
buffer_load_dword v{TMP+8}, v{TMP+5}, s[24:27], s14 offen
s_cmp_ge_u32 s13, 3
s_cbranch_scc1 K2_NOWARM
buffer_load_dword v{TMP+9}, v{TMP+6}, s[24:27], s41 offen
K2_NOWARM:""")
    srd(a,16,4,N*128); srd(a,20,6,E*32); srd(a,28,8,N*128)
    a(f"""
s_lshr_b32 s33, s13, 2                ; mt
s_and_b32 s34, s13, 3                 ; nt
v_and_b32 v162, 15, v1
v_lshrrev_b32 v163, 4, v1
v_lshlrev_b32 v164, 15, v162
v_lshl_add_u32 v164, v163, 4, v164    ; (l&15)*32768 + kq*16
s_lshl_b32 s35, s12, 7
s_lshl_b32 s36, s33, 19
s_add_u32 s68, s35, s36
s_add_u32 s69, s35, {3<<19}
buffer_load_dwordx4 v[{WB}:{WB+3}], v164, s[16:19], s68 offen
buffer_load_dwordx4 v[{WB+4}:{WB+7}], v164, s[16:19], s68 offen offset:64
buffer_load_dwordx4 v[{WB+8}:{WB+11}], v164, s[16:19], s69 offen
buffer_load_dwordx4 v[{WB+12}:{WB+15}], v164, s[16:19], s69 offen offset:64
s_lshl_b32 s36, s34, 10
s_add_u32 s37, s36, {WS_W2}
s_add_u32 s38, s36, {WS_W2+4096}
buffer_load_dwordx4 v[{WB+16}:{WB+19}], v{TMP+4}, s[24:27], s37 offen
buffer_load_dwordx4 v[{WB+20}:{WB+23}], v{TMP+4}, s[24:27], s38 offen
s_lshl_b32 s32, s13, 10
s_add_u32 m0, s32, {L_STG}
s_nop 0
buffer_load_dwordx4 v{TMP+4}, s[24:27], s32 offen lds
v_mov_b32 v{T}, 0
v_mov_b32 v{T+1}, 0
v_mov_b32 v{T+2}, 0
v_mov_b32 v{T+3}, 0
v_lshrrev_b32 v{T+4}, 5, v0
v_mul_u32_u24 v{T+4}, {ROWB}, v{T+4}
v_and_b32 v{T+5}, 31, v0
v_lshl_add_u32 v{T+4}, v{T+5}, 4, v{T+4}
ds_write_b128 v{T+4}, v[{T}:{T+3}]
ds_write_b128 v{T+4}, v[{T}:{T+3}] offset:{24*ROWB}
s_cmp_ge_u32 s13, 2
s_cbranch_scc1 K2_Z3
ds_write_b128 v{T+4}, v[{T}:{T+3}] offset:{48*ROWB}
K2_Z3:
s_mul_i32 s42, s13, {STGW}
s_add_u32 s42, s42, {L_STG}
s_mov_b32 s70, 0xbfb8aa3b             ; -log2(e)
s_mov_b32 s71, 0xbfb8aa3b
s_mov_b32 s96, 0x30800000             ; 2^-30
s_mov_b32 s97, 0x30800000
v_and_b32 v{T+6}, 31, v1              ; m / n
v_lshrrev_b32 v{T+7}, 5, v1           ; h
v_lshlrev_b32 v{N8}, 3, v{T+6}
v_bfe_u32 v{T+8}, v{T+6}, 2, 1        ; h_m
v_lshrrev_b32 v{T+9}, 3, v{T+6}       ; [u c2]
v_lshl_or_b32 v{T+9}, v{T+8}, 2, v{T+9}   ; e' = [h_m u c2]
v_and_b32 v{T+10}, 3, v{T+6}          ; q
v_lshl_or_b32 v{T+11}, v{T+9}, 2, v{T+10} ; t
v_cmp_eq_u32 vcc, v{T+8}, v{T+7}
v_mov_b32 v{QB+6}, 0
v_mov_b32 v{QB+7}, 0
v_mov_b32 v{QB+4}, 0x3f803f80
v_cndmask_b32 v{QB+4}, 0, v{QB+4}, vcc
v_cmp_gt_u32 vcc, 16, v{T+6}
v_lshl_or_b32 v{T+12}, v{T+8}, 2, v{T+10} ; f(t) = q | h_m<<2
v_xor_b32 v{T+12}, v{T+12}, v{T+7}    ; f ^ h
v_cndmask_b32 v{QB+5}, v{QB+4}, 0, vcc
v_cndmask_b32 v{QB+4}, 0, v{QB+4}, vcc
v_lshlrev_b32 v{T+13}, 10, v{T+10}
v_lshl_add_u32 v{T+13}, v{T+9}, 7, v{T+13}
v_add_u32 v{T+13}, s42, v{T+13}
""")
    for s in range(4):
        a(f"""v_xor_b32 v{T+14}, {2*s}, v{T+12}
v_lshl_add_u32 v{AR+s}, v{T+14}, 4, v{T+13}""")
    a(f"""
v_bfe_u32 v{T+14}, v{T+11}, 3, 1
v_xor_b32 v{T+14}, v{T+14}, v{T+7}
v_lshlrev_b32 v{T+14}, 4, v{T+14}
v_lshl_add_u32 v{T+14}, v{T+11}, 5, v{T+14}
s_add_u32 s3, s42, 4096
v_add_u32 v{AR+4}, s3, v{T+14}
v_lshlrev_b32 v{T+14}, 2, v{T+7}
v_and_b32 v{T+15}, 7, v1
v_xor_b32 v{T+14}, v{T+14}, v{T+15}
v_lshlrev_b32 v{CDX}, 4, v{T+14}
v_lshrrev_b32 v{T+14}, 4, v1
v_xor_b32 v{T+14}, v{T+14}, v1
v_and_b32 v{T+14}, 1, v{T+14}
v_lshlrev_b32 v{CDE}, 4, v{T+14}
v_bfe_u32 v{T+14}, v1, 3, 1
v_lshlrev_b32 v{T+14}, 4, v{T+14}
v_add_u32 v{CX}, {L_XO}, v{T+14}
v_bfe_u32 v{T+14}, v1, 1, 3
v_lshlrev_b32 v{T+14}, 2, v{T+14}
v_add_u32 v{CE}, {L_EO}, v{T+14}
s_lshl_b32 s35, s13, 8
s_add_u32 s35, s35, {L_CNT}
K2_ROUND:
v_lshlrev_b32 v{T+4}, 4, v0
v_add_u32 v{T+5}, {L_XO}, v{T+4}
v_add_u32 v{T+6}, {L_EO}, v{T+4}
v_mov_b32 v{T+8}, {XPAD}
v_mov_b32 v{T+9}, v{T+8}
v_mov_b32 v{T+10}, v{T+8}
v_mov_b32 v{T+11}, v{T+8}
v_mov_b32 v{T+12}, {PERM_DUMMY}
v_mov_b32 v{T+13}, v{T+12}
v_mov_b32 v{T+14}, v{T+12}
v_mov_b32 v{T+15}, v{T+12}
ds_write_b128 v{T+5}, v[{T+8}:{T+11}]
ds_write_b128 v{T+6}, v[{T+8}:{T+11}]
v_cmp_gt_u32 vcc, {(GRIDB-12288)//16}, v0
s_and_saveexec_b64 s[40:41], vcc
ds_write_b128 v{T+5}, v[{T+8}:{T+11}] offset:12288
ds_write_b128 v{T+6}, v[{T+8}:{T+11}] offset:12288
s_mov_b64 exec, s[40:41]
s_cmp_ge_u32 s13, 4
s_cbranch_scc1 K2_NOPF
ds_write_b128 v{T+4}, v[{T+12}:{T+15}] offset:{L_PERM}
K2_NOPF:
s_mov_b32 s39, 36                     ; R
s_mov_b32 s38, 0
s_cmp_eq_u32 s15, 0
s_cbranch_scc1 K2_FIRST
v_lshlrev_b32 v{TMP+5}, 10, v160
buffer_load_dword v{TMP+8}, v{TMP+5}, s[24:27], s14 offen
s_waitcnt vmcnt(0)
K2_FIRST:
v_cmp_gt_u32 vcc, {NCH}, v160
v_mul_u32_u24 v165, {CH}, v160        ; chunk*CH
v_mov_b32 v{TMP+10}, 0x7ffffff0
s_mov_b32 s3, {WS_REC}
s_waitcnt vmcnt(7)""")
    stamp(2)
    a(f"""
v_cndmask_b32 v{TMP+8}, 0, v{TMP+8}, vcc
v_lshrrev_b32 v166, 16, v{TMP+8}      ; count
v_and_b32 v{TMP+8}, 0xffff, v{TMP+8}  ; start
v_subrev_u32 v166, s15, v166
v_add3_u32 v{TMP+8}, v{TMP+8}, v165, v161
v_add_lshl_u32 v{TMP+8}, v{TMP+8}, s15, 2
v_sub_u32 v{TMP+11}, v166, v161
v_cmp_lt_i32 vcc, 0, v{TMP+11}
v_cmp_lt_i32 s[40:41], 12, v{TMP+11}
v_cmp_lt_i32 s[36:37], 24, v{TMP+11}
v_cndmask_b32 v{TMP+12}, v{TMP+10}, v{TMP+8}, vcc
v_cndmask_b32 v{TMP+13}, v{TMP+10}, v{TMP+8}, s[40:41]
buffer_load_dwordx4 v[{REC}:{REC+3}], v{TMP+12}, s[24:27], s3 offen
v_cndmask_b32 v{TMP+14}, v{TMP+10}, v{TMP+8}, s[36:37]
buffer_load_dwordx4 v[{REC+4}:{REC+7}], v{TMP+13}, s[24:27], s3 offen offset:48
buffer_load_dwordx4 v[{REC+8}:{REC+11}], v{TMP+14}, s[24:27], s3 offen offset:96
v_lshlrev_b32 v165, 5, v165
s_cmp_lg_u32 s15, 0
s_cbranch_scc1 K2_NOQ
s_waitcnt vmcnt(4)
v_mfma_f32_16x16x32_bf16 v[{WB+24}:{WB+27}], v[{WB}:{WB+3}], v[{WB+16}:{WB+19}], 0
v_mfma_f32_16x16x32_bf16 v[{WB+28}:{WB+31}], v[{WB+8}:{WB+11}], v[{WB+16}:{WB+19}], 0
v_mfma_f32_16x16x32_bf16 v[{WB+24}:{WB+27}], v[{WB+4}:{WB+7}], v[{WB+20}:{WB+23}], v[{WB+24}:{WB+27}]
v_mfma_f32_16x16x32_bf16 v[{WB+28}:{WB+31}], v[{WB+12}:{WB+15}], v[{WB+20}:{WB+23}], v[{WB+28}:{WB+31}]
v_mul_u32_u24 v{TMP+15}, {4*ROWB}, v163
v_lshl_add_u32 v{TMP+15}, v162, 3, v{TMP+15}
s_and_b32 s36, s34, 1
s_lshl_b32 s36, s36, 7
s_lshr_b32 s37, s34, 1
s_lshl_b32 s37, s37, 2
s_add_u32 s36, s36, s37
v_add_u32 v{TMP+16}, s36, v{TMP+15}
s_mul_i32 s37, s33, {16*ROWB}
v_add_u32 v{TMP+15}, s37, v{TMP+16}
v_cmp_gt_u32 vcc, 16, v1
""")
    for i in range(8):
        q=WB+24+i; h=WB+32+i; l=TMP+17
        a(f"""v_cvt_pk_bf16_f32 v{h}, v{q}, v{q}
v_lshlrev_b32 v{l}, 16, v{h}
v_sub_f32 v{l}, v{q}, v{l}
v_cvt_pk_bf16_f32 v{h}, v{q}, v{l}""")
    for i in range(4): a(f"ds_write_b32 v{TMP+15}, v{WB+32+i} offset:{512+i*ROWB}")
    a("s_and_saveexec_b64 s[40:41], vcc")
    for i in range(4): a(f"ds_write_b32 v{TMP+16}, v{WB+36+i} offset:{512+(48+i)*ROWB}")
    a(f"""
s_mov_b64 exec, s[40:41]
K2_NOQ:
s_waitcnt vmcnt(0)""")
    stamp(3)
    def blockC(lbl, body):
        a(f"s_cmp_eq_u64 s[{MK+16}:{MK+17}], 0\ns_cbranch_scc1 {lbl}")
        for i in range(8,12): body(i)
        a(f"{lbl}:")
    a(f"v_cmp_lt_i32 s[{MK+16}:{MK+17}], 24, v{TMP+11}")
    def unpack(i):
        a(f"""v_bfe_u32 v{CA+i}, v{REC+i}, 12, 6
v_lshl_add_u32 v{CA+i}, v{CA+i}, 2, s35""")
    for i in range(8): unpack(i)
    blockC("K2_C0", unpack)
    a(f"""
K2_RECOUNT:
v_lshl_add_u32 v{TMP}, v1, 2, s35
v_mov_b32 v{TMP+1}, 0
ds_write_b32 v{TMP}, v{TMP+1}
v_min_i32 v{TMP+11}, s39, v166
v_sub_u32 v{TMP+11}, v{TMP+11}, v161
v_mov_b32 v{TMP+2}, 1
v_cmp_lt_i32 s[40:41], s39, v166
""")
    for i in range(12):
        a(f"v_cmp_lt_i32 s[{MK+2*i}:{MK+2*i+1}], {(i&3)+12*(i>>2)}, v{TMP+11}")
    def cnt(i):
        a(f"""s_mov_b64 exec, s[{MK+2*i}:{MK+2*i+1}]
ds_add_rtn_u32 v{LR+i}, v{CA+i}, v{TMP+2}""")
    for i in range(8): cnt(i)
    blockC("K2_C1", cnt)
    a(f"""
s_mov_b64 exec, s[40:41]
v_mov_b32 v{TMP+3}, s35
ds_add_u32 v{TMP+3}, v{TMP+2} offset:252
s_mov_b64 exec, -1
s_cmp_lg_u32 s38, 0
s_cbranch_scc1 K2_NOUNP
s_mov_b32 s3, 0xffffff80
""")
    def unp2(i):
        a(f"""v_lshrrev_b32 v{XOF+i}, 11, v{REC+i}
v_and_b32 v{XOF+i}, s3, v{XOF+i}
v_and_b32 v{REC+i}, 0xfff, v{REC+i}
v_lshl_add_u32 v{REC+i}, v{REC+i}, 5, v165""")
    for i in range(8): unp2(i)
    blockC("K2_C2", unp2)
    a(f"""
K2_NOUNP:
v_lshlrev_b32 v{TMP}, 2, v1
s_waitcnt lgkmcnt(0)
s_barrier""")
    stamp(4)
    PF=TMP+4
    for r in range(0,NW,2): a(f"ds_read2st64_b32 v[{PF+2+r}:{PF+3+r}], v{TMP} offset0:{L_CNT//256+r} offset1:{L_CNT//256+r+1}")
    a(f"""
v_mov_b32 v{PF+1}, 0
v_cmp_gt_u32 vcc, 63, v1
s_mov_b32 s3, 0x03000020
v_mul_lo_u32 v{TMP+1}, v1, s3         ; PJ
s_waitcnt lgkmcnt(0)
""")
    for r in range(1,NW): a(f"v_add_u32 v{PF+2+r}, v{PF+1+r}, v{PF+2+r}")
    TOT=PF+13; OC=TMP+18; BS=TMP+19; RED=TMP+20; NPD=167
    a(f"""
s_set_gpr_idx_on s13, gpr_idx(SRC0)
s_nop 1
v_mov_b32 v{BS}, v{PF+1}
s_set_gpr_idx_off
s_nop 1
v_readlane_b32 s36, v{TOT}, 63
v_cndmask_b32 v{TOT}, 0, v{TOT}, vcc
v_add_u32 v{OC}, 7, v{TOT}
v_lshrrev_b32 v{OC}, 3, v{OC}
v_lshlrev_b32 v{NPD}, 3, v{OC}
v_sub_u32 v{NPD}, v{NPD}, v{TOT}
s_cmp_lg_u32 s38, 0
s_cbranch_scc1 K2_DENSE
v_cmp_lt_u32 vcc, {KMAX}, v{OC}
v_lshlrev_b32 v{BS}, 2, v{BS}
v_add_u32 v{TMP+2}, s35, v{TMP}
s_cbranch_vccz K2_FAST
s_mov_b32 s38, 1
s_mov_b32 s39, 12
s_barrier
s_branch K2_RECOUNT
K2_DENSE:
v_mov_b32 v{RED}, v{OC}
""")
    scan_add(a,RED)
    a(f"""
s_nop 0
v_readlane_b32 s37, v{RED}, 63
v_sub_u32 v{RED}, v{RED}, v{OC}
v_lshl_add_u32 v{BS}, v{RED}, 3, v{BS}
v_lshlrev_b32 v{BS}, 2, v{BS}
v_add_u32 v{TMP+2}, s35, v{TMP}
ds_write_b32 v{TMP+2}, v{BS} offset:{L_BASE-L_CNT}
v_and_b32 v{TMP+1}, 0xffff0000, v{TMP+1}
s_mov_b32 s43, s13
K2_DL:
v_cmp_lt_u32 vcc, s43, v{OC}
s_cbranch_vccz K2_DLE
v_add_u32 v{TMP+3}, s43, v{RED}
v_lshl_or_b32 v{TMP+21}, v{TMP+3}, 5, v{TMP+1}
v_lshlrev_b32 v{TMP+3}, 2, v{TMP+3}
s_mov_b64 exec, vcc
ds_write_b32 v{TMP+3}, v{TMP+21} offset:{L_PERM}
s_mov_b64 exec, -1
s_add_u32 s43, s43, {NW}
s_branch K2_DL
K2_DLE:
s_mov_b32 s98, 32                     ; sK
s_mov_b32 s99, 0
v_mov_b32 v{TMP+22}, {L_XO}
s_branch K2_SCAT
K2_FAST:
ds_write_b32 v{TMP+2}, v{BS} offset:{L_BASE-L_CNT}
s_mov_b32 s98, {ROWK}
s_mov_b32 s99, 8
s_lshl_b32 s3, s35, 3
s_sub_u32 s3, {L_XO}, s3
v_mov_b32 v{TMP+22}, s3
K2_SCAT:
""")
    def look(i):
        a(f"""s_mov_b64 exec, s[{MK+2*i}:{MK+2*i+1}]
ds_read_b32 v{B4+i}, v{CA+i} offset:{L_BASE-L_CNT}""")
    for i in range(8): look(i)
    blockC("K2_C3", look)
    a(f"""
s_mov_b64 exec, -1
s_cmp_lg_u32 s38, 0
s_cbranch_scc1 K2_PERMDONE
s_mov_b32 s43, s13
K2_PL:
v_min_u32 v{RED}, s43, v{OC}
v_lshl_or_b32 v{RED}, v{OC}, 16, v{RED}
v_cmp_lt_u32 vcc, s43, v{OC}
""")
    scan_add(a,RED)
    a(f"""
s_mul_i32 s3, s43, {ROWK}
v_readlane_b32 s37, v{RED}, 63
v_mbcnt_lo_u32_b32 v{TMP+3}, vcc_lo, 0
v_mbcnt_hi_u32_b32 v{TMP+3}, vcc_hi, v{TMP+3}
v_add_u32 v{TMP+21}, s3, v{TMP+1}
s_and_b32 s3, s37, 0xffff
s_lshr_b32 s37, s37, 16
v_add_lshl_u32 v{TMP+3}, v{TMP+3}, s3, 2
s_mov_b64 exec, vcc
ds_write_b32 v{TMP+3}, v{TMP+21} offset:{L_PERM}
s_mov_b64 exec, -1
s_add_u32 s43, s43, {NW}
v_cmp_lt_u32 vcc, s43, v{OC}
s_cbranch_vccnz K2_PL
K2_PERMDONE:
s_waitcnt lgkmcnt(0)
""")
    def scat(i):
        a(f"""s_mov_b64 exec, s[{MK+2*i}:{MK+2*i+1}]
v_lshl_add_u32 v{B4+i}, v{LR+i}, 2, v{B4+i}
v_mad_u32_u24 v{LR+i}, v{CA+i}, s99, v{TMP+22}
v_and_or_b32 v{LR+i}, v{B4+i}, 28, v{LR+i}
v_lshrrev_b32 v{B4+i}, 5, v{B4+i}
v_mad_u32_u24 v{B4+i}, v{B4+i}, s98, v{LR+i}
ds_write2st64_b32 v{B4+i}, v{XOF+i}, v{REC+i} offset0:0 offset1:{GRIDB//256}""")
    for i in range(8): scat(i)
    blockC("K2_C4", scat)
    a(f"""
s_mov_b64 exec, -1
s_cmp_lg_u32 s15, 0
s_cbranch_scc1 K2_WDONE
v_lshlrev_b32 v{TMP}, 4, v1
v_add_u32 v{TMP}, {L_STG}, v{TMP}
""")
    for f in range(10): a(f"ds_read_b128 v[{WB+4*f}:{WB+4*f+3}], v{TMP} offset:{f*1024}")
    a(f"""
K2_WDONE:
s_add_u32 s37, s37, 3
s_lshr_b32 s37, s37, 2                ; ngroups
s_lshl_b32 s3, s13, 4
s_add_u32 s3, s3, {L_PERM}
v_lshrrev_b32 v{TMP+1}, 4, v1
v_lshl_add_u32 v{PA1}, v{TMP+1}, 2, s3
v_lshrrev_b32 v{TMP+1}, 5, v1
v_lshl_add_u32 v{PA3}, v{TMP+1}, 3, s3
s_add_u32 s43, s42, 1024
s_add_u32 s44, s42, 2048
s_add_u32 s45, s42, 3072
s_add_u32 s46, s42, 4096
s_mov_b32 s52, s13
s_waitcnt lgkmcnt(0)
s_barrier""")
    stamp(5)
    GS=NW*16
    SD="dst_sel:DWORD dst_unused:UNUSED_PAD"
    def idx_addr():
        return [f"v_add_u32_sdwa v{AXA}, v{P1}, v{CX} {SD} src0_sel:WORD_0 src1_sel:DWORD",
                f"v_add_u32_sdwa v{AEA}, v{P1}, v{CE} {SD} src0_sel:WORD_0 src1_sel:DWORD"]
    def idx_read():
        return [f"ds_read_b128 v[{XOr}:{XOr+3}], v{AXA}", f"ds_read_b32 v{EOr}, v{AEA}"]
    def sy_calc():
        return [f"v_add_u32_sdwa v{SY}, v{P3}, v{N8} {SD} src0_sel:WORD_1 src1_sel:DWORD",
                f"v_add_u32_sdwa v{SY+1}, v{P3+1}, v{N8} {SD} src0_sel:WORD_1 src1_sel:DWORD"]
    def q_ax_read():
        l=[f"ds_read_b128 v[{AE}:{AE+3}], v{AR+4}",
           f"ds_read_b32 v{QB}, v{SY} offset:512", f"ds_read_b32 v{QB+1}, v{SY+1} offset:512",
           f"ds_read_b32 v{QB+2}, v{SY} offset:516", f"ds_read_b32 v{QB+3}, v{SY+1} offset:516"]
        l+=[f"ds_read_b128 v[{AX+4*s}:{AX+4*s+3}], v{AR+s}" for s in range(4)]
        return l
    def issue_loads(lbl):
        a(f"s_cmp_ge_u32 s52, s37\ns_cbranch_scc1 {lbl}")
        a(f"""s_mov_b32 m0, s46
v_add_u32 v{EOr}, v{EOr}, v{CDE}
{"" if opt.get('noe') else f"buffer_load_dwordx4 v{EOr}, s[20:23], 0 offen lds {opt.get('epol','')}"}""")
        for q in range(4):
            a(f"""s_mov_b32 m0, s{42+q}
v_xad_u32 v{XOr+q}, v{CDX}, {16*q}, v{XOr+q}
{"" if opt.get('nox') else f"buffer_load_dwordx4 v{XOr+q}, s[16:19], 0 offen lds"}""")
        a(f"{lbl}:\ns_add_u32 s52, s52, {NW}")
    W=lambda s,t: f"v[{WB+4*(2*s+t)}:{WB+4*(2*s+t)+3}]"
    Dr=lambda t: (D0 if t==0 else D1)
    Dt=lambda t: f"v[{Dr(t)}:{Dr(t)+15}]"
    MF="v_mfma_f32_32x32x16_bf16"
    def mfmas(t):
        l=[f"{MF} {Dt(t)}, v[{AE}:{AE+3}], {W(4,t)}, 0",
           f"{MF} {Dt(t)}, v[{QB+4}:{QB+7}], v[{QB+2*t}:{QB+2*t+3}], {Dt(t)}"]
        l+=[f"{MF} {Dt(t)}, v[{AX+4*s}:{AX+4*s+3}], {W(s,t)}, {Dt(t)}" for s in range(4)]
        return l
    def P(r): return f"v[{r}:{r+1}]"
    def scale(t): return [f"v_pk_mul_f32 {P(T+2*i)}, {P(Dr(t)+2*i)}, s[70:71]" for i in range(8)]
    def exps(): return [f"v_exp_f32 v{T+i}, v{T+i}" for i in range(16)]
    def rcps(): return [f"v_rcp_f32 v{NP+4*o+2+i}, v{NP+4*o+2+i}" for o in range(2) for i in range(2)]
    def flush(tile):
        l=[f"v_mul_f32 v{NP+4*o}, v{NP+4*o}, v{NP+4*o+2}" for o in range(2)]
        l+=[f"v_fmac_f32 v{NP+4*o}, v{NP+4*o+1}, v{NP+4*o+3}" for o in range(2)]
        l+=[f"v_cvt_f64_f32 {P(FT+2*o)}, v{NP+4*o}" for o in range(2)]
        l+=[f"ds_add_f64 v{SX+o}, {P(FT+2*o)} offset:{256*tile}" for o in range(2)]
        return l
    def pkphase(t):
        seq=[]
        for o in range(2):
            z=Dr(t)+8*o; tt=T+8*o; p=P(PT+2*o); Nn=P(NP+4*o); Pq=P(NP+4*o+2)
            A_,B_,C_,D_=[P(z+2*i) for i in range(4)]
            tA,tB,tC,tD=[P(tt+2*i) for i in range(4)]
            s=[[f"v_pk_fma_f32 {P(tt+2*i)}, {P(tt+2*i)}, s[96:97], s[96:97] clamp" for i in range(4)],
               [f"v_pk_mul_f32 {p}, {tA}, {tB}", f"v_pk_mul_f32 {A_}, {A_}, {tB}", f"v_pk_mul_f32 {C_}, {C_}, {tD}"],
               [f"v_pk_fma_f32 {A_}, {B_}, {tA}, {A_}", f"v_pk_fma_f32 {C_}, {D_}, {tC}, {C_}", f"v_pk_mul_f32 {B_}, {tC}, {tD}"],
               [f"v_pk_mul_f32 {A_}, {A_}, {B_}", f"v_pk_mul_f32 {Pq}, {p}, {B_}"],
               [f"v_pk_fma_f32 {Nn}, {C_}, {p}, {A_}"]]
            seq.append(s)
        l=[]
        for st in range(5):
            for o in range(2): l+=seq[o][st]
        return l
    def weave(mf, tr, rest):
        out=[]; tr=list(tr)
        for m in mf:
            out.append(m); out+=tr[:3]; tr=tr[3:]
        return out+tr+rest
    emit=lambda l: [a(x) for x in l]
    NOV=opt.get('novalu')
    a(f"""
s_cmp_ge_u32 s52, s37
s_cbranch_scc1 K2_CORR
ds_read_b32 v{P1}, v{PA1}
ds_read_b64 v[{P3}:{P3+1}], v{PA3}
s_waitcnt lgkmcnt(0)""")
    emit(idx_addr()); emit(idx_read()); emit(sy_calc())
    a(f"ds_read_b32 v{P1}, v{PA1} offset:{GS}\nds_read_b64 v[{P3}:{P3+1}], v{PA3} offset:{GS}\ns_waitcnt lgkmcnt(0)")
    issue_loads("K2_IL0")
    emit(idx_addr()); emit(idx_read())
    a(f"ds_read_b32 v{P1}, v{PA1} offset:{2*GS}")
    a(f"v_add_u32 v{PA1}, {3*GS}, v{PA1}\nv_add_u32 v{PA3}, {2*GS}, v{PA3}")
    a(f"""
K2_CORR:
v_and_b32 v{T}, 31, v1
v_lshlrev_b32 v{T}, 3, v{T}
v_lshrrev_b32 v{T+1}, 5, v1
v_lshl_add_u32 v{T}, v{T+1}, 2, v{T}
s_mul_i32 s3, s13, {ROWB}
v_add_u32 v{T}, s3, v{T}              ; q address
v_lshl_add_u32 v{T+1}, v1, 3, s3
v_cvt_f32_u32 v{T+2}, v{NPD}
v_mul_f32 v{T+2}, 0xce800000, v{T+2}  ; -npad * 2^30
s_mov_b32 s47, 0xffff0000
""")
    for i in range(5): a(f"ds_read_b32 v{D0+i}, v{T} offset:{512+12*i*ROWB}")
    for i in range(5): a(f"s_add_u32 s3, s13, {12*i}\ns_nop 0\nv_readlane_b32 s{53+i}, v{T+2}, s3")
    a("s_waitcnt lgkmcnt(0)")
    for i in range(5): a(f"v_lshlrev_b32 v{D0+5+i}, 16, v{D0+i}\nv_and_b32 v{D0+i}, s47, v{D0+i}\nv_add_f32 v{D0+i}, v{D0+i}, v{D0+5+i}")
    for i in range(5): a(f"v_mul_f32 v{D0+5+i}, s70, v{D0+i}")
    for i in range(5): a(f"v_exp_f32 v{D0+5+i}, v{D0+5+i}")
    for i in range(5): a(f"v_add_f32 v{D0+5+i}, 1.0, v{D0+5+i}")
    for i in range(5): a(f"v_rcp_f32 v{D0+5+i}, v{D0+5+i}")
    for i in range(5): a(f"v_mul_f32 v{D0+i}, s{53+i}, v{D0+i}")
    for i in range(5): a(f"v_mul_f32 v{D0+i}, v{D0+i}, v{D0+5+i}")
    for i in range(5): a(f"v_cvt_f64_f32 {P(D1+2*i)}, v{D0+i}")
    for i in range(4): a(f"ds_add_f64 v{T+1}, {P(D1+2*i)} offset:{12*i*ROWB}")
    a(f"""
s_cmp_lg_u32 s13, 0
s_cbranch_scc1 K2_CORR2
ds_add_f64 v{T+1}, {P(D1+8)} offset:{48*ROWB}
K2_CORR2:
s_cmp_ge_u32 s13, s37
s_cbranch_scc1 K2_LOOPEND
v_mov_b32 v{NP}, 0
v_mov_b32 v{NP+1}, 0
v_mov_b32 v{NP+2}, 1.0
v_mov_b32 v{NP+3}, 1.0
v_mov_b32 v{NP+4}, 0
v_mov_b32 v{NP+5}, 0
v_mov_b32 v{NP+6}, 1.0
v_mov_b32 v{NP+7}, 1.0
v_mov_b32 v{SX}, v{SY}
v_mov_b32 v{SX+1}, v{SY+1}
s_mov_b32 s48, s13
s_waitcnt vmcnt(0)""")
    stamp(6)
    emit(q_ax_read())
    a("s_waitcnt lgkmcnt(0)")
    issue_loads("K2_IL1")
    emit(mfmas(0))
    a("s_nop 11")
    emit(scale(0))
    a("K2_LOOP:")
    restA=flush(1)+[f"v_mov_b32 v{SX}, v{SY}", f"v_mov_b32 v{SX+1}, v{SY+1}"]+sy_calc()+idx_addr()+idx_read()+[
        f"ds_read_b32 v{P1}, v{PA1}", f"ds_read_b64 v[{P3}:{P3+1}], v{PA3}",
        f"v_add_u32 v{PA1}, {GS}, v{PA1}", f"v_add_u32 v{PA3}, {GS}, v{PA3}"]
    emit(weave(mfmas(1), [] if NOV else rcps()+exps(), restA))
    a("s_waitcnt vmcnt(0)")
    emit(q_ax_read())
    if not NOV: emit(pkphase(0)); emit(scale(1))
    else: a("s_nop 7")
    a("s_waitcnt lgkmcnt(0)")
    issue_loads("K2_IL2")
    emit(weave(mfmas(0), [] if NOV else rcps()+exps(), flush(0)))
    if not NOV: emit(pkphase(1)); emit(scale(0))
    else: a("s_nop 7")
    a(f"""
s_add_u32 s48, s48, {NW}
s_cmp_lt_u32 s48, s37
s_cbranch_scc1 K2_LOOP""")
    emit(rcps()); a("s_nop 0"); emit(flush(1))
    a(f"""
K2_LOOPEND:
s_waitcnt vmcnt(0)
s_cmp_eq_u32 s36, 0
s_cbranch_scc1 K2_EPI
s_add_u32 s15, s15, s39
s_waitcnt lgkmcnt(0)
s_barrier
s_branch K2_ROUND
K2_EPI:""")
    stamp(7)
    XA=36; WU=52; GB=68
    a(f"""
buffer_load_dwordx4 v[{XA}:{XA+3}], v164, s[16:19], s68 offen
buffer_load_dwordx4 v[{XA+4}:{XA+7}], v164, s[16:19], s68 offen offset:64
buffer_load_dwordx4 v[{XA+8}:{XA+11}], v164, s[16:19], s69 offen
buffer_load_dwordx4 v[{XA+12}:{XA+15}], v164, s[16:19], s69 offen offset:64
v_lshlrev_b32 v2, 4, v1
s_lshl_b32 s36, s34, 10
""")
    for s in range(4):
        a(f"s_add_u32 s37, s36, {WS_WU+4096*s}\nbuffer_load_dwordx4 v[{WU+4*s}:{WU+4*s+3}], v2, s[24:27], s37 offen")
    a(f"""
s_mul_i32 s3, s13, {ROWB}
v_lshl_add_u32 v3, v1, 3, s3
s_mul_i32 s3, s13, {AGGB_STRIDE}
s_add_u32 s3, s3, {L_STG}
v_lshl_add_u32 v4, v1, 1, s3
v_mul_u32_u24 v5, {AGGB_STRIDE}, v162
v_lshl_add_u32 v5, v163, 4, v5
v_add_u32 v5, {L_STG}, v5
s_mul_i32 s3, s33, {16*AGGB_STRIDE}
v_add_u32 v6, s3, v5
v_lshlrev_b32 v7, 15, v162
v_lshl_add_u32 v7, v163, 3, v7
s_lshl_b32 s36, s34, 5
s_add_u32 s68, s68, s36
s_add_u32 s69, s69, s36
s_mov_b32 s3, 0xffff0000
s_waitcnt lgkmcnt(0)
s_barrier""")
    stamp(8)
    for i in range(5): a(f"ds_read_b64 {P(D0+2*i)}, v3 offset:{12*i*ROWB}")
    for i in range(5): a(f"s_waitcnt lgkmcnt({4-i if not DBG else 0})\nv_cvt_f32_f64 v{D1+i}, {P(D0+2*i)}")
    for i in range(5): a(f"v_mul_f32 v{D1+i}, s96, v{D1+i}")
    for i in range(5): a(f"v_cvt_pk_bf16_f32 v{D1+i}, v{D1+i}, v{D1+i}")
    for i in range(5): a(f"ds_write_b16 v4, v{D1+i} offset:{12*i*AGGB_STRIDE}")
    M16="v_mfma_f32_16x16x32_bf16"
    a(f"""
s_waitcnt vmcnt(0)
{M16} v[{D0}:{D0+3}], v[{WU}:{WU+3}], v[{XA}:{XA+3}], 0
{M16} v[{D0+4}:{D0+7}], v[{WU}:{WU+3}], v[{XA+8}:{XA+11}], 0
{M16} v[{D0}:{D0+3}], v[{WU+4}:{WU+7}], v[{XA+4}:{XA+7}], v[{D0}:{D0+3}]
{M16} v[{D0+4}:{D0+7}], v[{WU+4}:{WU+7}], v[{XA+12}:{XA+15}], v[{D0+4}:{D0+7}]
s_waitcnt lgkmcnt(0)
s_barrier
ds_read_b128 v[{GB}:{GB+3}], v6
ds_read_b128 v[{GB+4}:{GB+7}], v5 offset:{48*AGGB_STRIDE}
ds_read_b128 v[{GB+8}:{GB+11}], v6 offset:64
ds_read_b128 v[{GB+12}:{GB+15}], v5 offset:{48*AGGB_STRIDE+64}
s_waitcnt lgkmcnt(2)
{M16} v[{D0}:{D0+3}], v[{WU+8}:{WU+11}], v[{GB}:{GB+3}], v[{D0}:{D0+3}]
{M16} v[{D0+4}:{D0+7}], v[{WU+8}:{WU+11}], v[{GB+4}:{GB+7}], v[{D0+4}:{D0+7}]
s_waitcnt lgkmcnt(0)
{M16} v[{D0}:{D0+3}], v[{WU+12}:{WU+15}], v[{GB+8}:{GB+11}], v[{D0}:{D0+3}]
{M16} v[{D0+4}:{D0+7}], v[{WU+12}:{WU+15}], v[{GB+12}:{GB+15}], v[{D0+4}:{D0+7}]
s_nop 7
""")
    for i in range(4): a(f"v_cvt_pk_bf16_f32 v{D1+i}, v{D0+2*i}, v{D0+2*i+1}")
    for i in range(4): a(f"v_lshlrev_b32 v{D0+2*i}, 16, v{D1+i}\nv_and_b32 v{D0+2*i+1}, s3, v{D1+i}")
    for i in range(8): a(f"v_mul_f32 v{D0+8+i}, s70, v{D0+i}")
    for i in range(8): a(f"v_exp_f32 v{D0+8+i}, v{D0+8+i}")
    for i in range(8): a(f"v_add_f32 v{D0+8+i}, 1.0, v{D0+8+i}")
    for i in range(8): a(f"v_rcp_f32 v{D0+8+i}, v{D0+8+i}")
    for i in range(8): a(f"v_mul_f32 v{D0+8+i}, v{D0+i}, v{D0+8+i}")
    for i in range(4): a(f"v_cvt_pk_bf16_f32 v{D1+i}, v{D0+8+2*i}, v{D0+9+2*i}")
    a(f"""
buffer_store_dwordx2 v[{D1}:{D1+1}], v7, s[28:31], s68 offen
s_cmp_ge_u32 s13, 4
s_cbranch_scc1 K2_NOST
buffer_store_dwordx2 v[{D1+2}:{D1+3}], v7, s[28:31], s69 offen
K2_NOST:""")
    if DBG:
        a("s_waitcnt vmcnt(0)"); stamp(9,True)
        a("s_mov_b32 s26, 0x10000000\ns_lshl_b32 s3, s2, 4\ns_add_u32 s3, s3, s13\ns_lshl_b32 s3, s3, 7\ns_add_u32 s3, s3, 0x800000\nv_mov_b32 v2, 0")
        for i in range(6):
            for j in range(4): a(f"v_mov_b32 v{4+j}, s{72+4*i+j}")
            a(f"buffer_store_dwordx4 v[4:7], v2, s[24:27], s3 offen offset:{16*i}\ns_nop 1")
    if opt.get('leak'): a(leak(72,2048).replace("buffer_atomic_umin","buffer_store_dword").replace("buffer_atomic_umax","buffer_store_dword"))
    a("K2_END:")
    return a.txt(), 168

def kd(name, nv):
    return f""".amdhsa_kernel {name}
  .amdhsa_next_free_vgpr {nv}
  .amdhsa_next_free_sgpr 102
  .amdhsa_accum_offset {(nv+3)//4*4}
  .amdhsa_group_segment_fixed_size 0
  .amdhsa_kernarg_size 72
  .amdhsa_user_sgpr_count 2
  .amdhsa_user_sgpr_kernarg_segment_ptr 1
  .amdhsa_system_sgpr_workgroup_id_x 1
  .amdhsa_float_denorm_mode_32 3
.end_amdhsa_kernel
"""
def build(opt):
    b1,n1=k1(opt); b2,n2=k2(opt)
    lk=opt.get('leak','00')
    def red(arr, dst):
        op="min" if arr in (0,2) else "max"
        t=f"buffer_load_dwordx4 v[4:7], v1, s[8:11], s3 offen offset:{arr*1024}\ns_waitcnt vmcnt(0)\n"
        t+=f"v_{op}_u32 v4, v4, v5\nv_{op}_u32 v6, v6, v7\nv_{op}_u32 v4, v4, v6\n"
        for sh in (1,2,4,8): t+=f"s_nop 1\nv_{op}_u32_dpp v4, v4, v4 row_shr:{sh} row_mask:0xf bank_mask:0xf\n"
        t+=f"s_nop 1\nv_{op}_u32_dpp v4, v4, v4 row_bcast:15 row_mask:0xa bank_mask:0xf\ns_nop 1\nv_{op}_u32_dpp v4, v4, v4 row_bcast:31 row_mask:0xc bank_mask:0xf\n"
        t+=f"s_nop 1\nv_readlane_b32 s{dst}, v4, 63\n"
        return t
    K3=""".globl mpnn_leak_kernel
.p2align 8
.type mpnn_leak_kernel,@function
mpnn_leak_kernel:
s_cmp_lg_u32 s2, 0
s_cbranch_scc1 K3_END
s_memrealtime s[20:21]
s_load_dwordx2 s[4:5], s[0:1], 64
v_min_u32 v1, 61, v0
v_lshlrev_b32 v1, 4, v1
s_mov_b32 s3, 0x900000
s_waitcnt lgkmcnt(0)
s_mov_b32 s8, s4
s_and_b32 s9, s5, 0xffff
s_mov_b32 s10, 0x10000000
s_mov_b32 s11, 0x20000
"""
    if lk!='none' and opt.get('leak'):
        K3+=red(int(lk[0]),12)
        K3+=(red(int(lk[1]),13) if lk[1]!='4' else "s_mov_b32 s13, s20\n")
        K3+="""s_nop 3
s_sub_u32 s14, s13, s12
s_min_u32 s14, s14, 10000
s_lshl_b32 s14, s14, 2
"""
    else:
        K3+=red(0,12)+red(1,13)+"s_mov_b32 s14, 0\n"
    K3+="""s_memrealtime s[16:17]
s_waitcnt lgkmcnt(0)
K3_L:
s_memrealtime s[18:19]
s_waitcnt lgkmcnt(0)
s_sub_u32 s15, s18, s16
s_cmp_lt_u32 s15, s14
s_cbranch_scc1 K3_L
K3_END:
s_endpgm
"""
    s=f"""; MPNN edge-MLP: K1 partitions edges by destination bucket (and re-lays-out weights), K2 does everything else.
; @launch kernel=mpnn_part_kernel grid=({K1_GRID},1,1) block=({K1_BLOCK},1,1) lds={K1_LDS}
; @launch kernel=mpnn_main_kernel grid=(256,1,1) block=({NW*64},1,1) lds={K2_LDS}
{"; @launch kernel=mpnn_leak_kernel grid=(1,1,1) block=(64,1,1) lds=0"+chr(10) if opt.get('leak') else ""}.amdgcn_target "amdgcn-amd-amdhsa--gfx950"
.text
.globl mpnn_part_kernel
.p2align 8
.type mpnn_part_kernel,@function
mpnn_part_kernel:
{b1}    s_endpgm
.globl mpnn_main_kernel
.p2align 8
.type mpnn_main_kernel,@function
mpnn_main_kernel:
{b2}    s_endpgm
{K3 if opt.get('leak') else ""}.section .rodata,"a"
{(".p2align 6"+chr(10)+kd('mpnn_leak_kernel',16)) if opt.get('leak') else ""}.p2align 6
{kd('mpnn_part_kernel',n1)}.p2align 6
{kd('mpnn_main_kernel',n2)}"""
    return s
if __name__=="__main__":
    out=sys.argv[1] if len(sys.argv)>1 else "standalone__mpnn_edge_mlp__graph.s"
    opt=dict(kv.split("=",1) for kv in sys.argv[2:])
    open(out,"w").write(build(opt))
    print("SWZ",SWZ,"K2_LDS",K2_LDS)
```

```python
import sys
N=12500; E=800000; CH=3200; NCH=250
WS_WM=0; WS_W2=10240; WS_WU=18432; WS_TAB=65536; WS_REC=524288
WS_SIZE=WS_REC+E*4+4096

class A:
    def __init__(s): s.l=[]
    def __call__(s, txt):
        for ln in txt.strip("\n").split("\n"):
            ln=ln.strip()
            if ln: s.l.append(("" if ln.endswith(":") else "    ")+ln)
    def txt(s): return "\n".join(s.l)+"\n"

def srd(a,d,b,n):
    a(f"""s_mov_b32 s{d}, s{b}
s_and_b32 s{d+1}, s{b+1}, 0xffff
s_mov_b32 s{d+2}, {n}
s_mov_b32 s{d+3}, 0x20000""")

def scan_add(a, v):
    for sh in (1,2,4,8):
        a(f"s_nop 1\nv_add_u32_dpp v{v}, v{v}, v{v} row_shr:{sh} row_mask:0xf bank_mask:0xf bound_ctrl:0")
    a(f"s_nop 1\nv_add_u32_dpp v{v}, v{v}, v{v} row_bcast:15 row_mask:0xa bank_mask:0xf")
    a(f"s_nop 1\nv_add_u32_dpp v{v}, v{v}, v{v} row_bcast:31 row_mask:0xc bank_mask:0xf")

K1_BLOCK=832
K1_GRID=256
K1_STAGE=1024
K1_LDS=1024+CH*4
def xpf(a,opt):
    if not opt.get('xpf'): return
    srd(a,36,32,N*128)
    a(f"""s_lshr_b32 s34, s2, 3
s_mul_i32 s34, s34, {391*128}
v_lshlrev_b32 v23, 7, v0
v_cmp_gt_u32 vcc, 391, v0
v_mov_b32 v22, 0x7ffffff0
s_nop 0
v_cndmask_b32 v23, v22, v23, vcc
buffer_load_dword v23, v23, s[36:39], s34 offen""")
def leak(st, base):
    return f"""s_waitcnt vmcnt(0)
s_memrealtime s[{st+2}:{st+3}]
s_mov_b32 s26, 0x10000000
s_lshl_b32 s3, s2, 2
s_add_u32 s3, s3, {0x900000+base}
s_waitcnt lgkmcnt(0)
v_mov_b32 v2, 0
v_mov_b32 v3, s{st}
v_mov_b32 v4, s{st+2}
buffer_atomic_umin v3, v2, s[24:27], s3 offen
buffer_atomic_umax v4, v2, s[24:27], s3 offen offset:1024
"""
def k1(opt):
    a=A()
    LEAK1=leak(40,0).replace("buffer_atomic_umin","buffer_store_dword").replace("buffer_atomic_umax","buffer_store_dword")
    a(f"""
s_cmp_ge_u32 s2, {K1_GRID}
s_cbranch_scc1 K1_END
{"s_memrealtime s[40:41]" if opt.get('leak') else ""}
s_load_dwordx4 s[4:7], s[0:1], 16
s_load_dwordx4 s[8:11], s[0:1], 32
s_load_dwordx2 s[12:13], s[0:1], 64
s_load_dwordx2 s[32:33], s[0:1], 0
v_lshrrev_b32 v2, 6, v0
v_and_b32 v3, 63, v0
v_readfirstlane_b32 s14, v2
s_cmp_ge_u32 s2, {NCH}
s_cbranch_scc1 K1_WPREP
v_lshlrev_b32 v1, 4, v0
v_lshlrev_b32 v2, 2, v0
v_mov_b32 v20, 0
v_mov_b32 v21, 1
v_cmp_gt_u32 vcc, 256, v0
s_and_saveexec_b64 s[30:31], vcc
ds_write_b32 v2, v20
s_mov_b64 exec, s[30:31]
s_mul_i32 s3, s2, {CH*4}
v_cmp_gt_u32 vcc, {CH//4}, v0
s_waitcnt lgkmcnt(0)
""")
    srd(a,16,4,E*4); srd(a,20,6,E*4); srd(a,24,12,WS_SIZE)
    a(f"""
s_and_b64 exec, exec, vcc
buffer_load_dwordx4 v[4:7], v1, s[20:23], s3 offen nt
buffer_load_dwordx4 v[8:11], v1, s[16:19], s3 offen nt
""")
    xpf(a,opt)
    a(f"""
s_barrier
s_waitcnt vmcnt({2 if opt.get('xpf') else 1})
""")
    for i in range(4):
        a(f"""v_lshlrev_b32 v{12+i}, 2, v{4+i}
v_and_b32 v{12+i}, 0x3fc, v{12+i}
ds_add_rtn_u32 v{16+i}, v{12+i}, v21""")
    for i in range(4):
        a(f"""v_lshrrev_b32 v{4+i}, 8, v{4+i}
v_add_u32 v22, {i}, v2
v_lshl_or_b32 v{4+i}, v{4+i}, 12, v22""")
    a(f"s_waitcnt vmcnt({1 if opt.get('xpf') else 0})")
    for i in range(4):
        a(f"v_lshl_or_b32 v{4+i}, v{8+i}, 18, v{4+i}")
    a(f"""
s_waitcnt lgkmcnt(0)
s_barrier
s_cmp_lg_u32 s14, 0
s_cbranch_scc1 K1_SKIPSCAN
ds_read_b128 v[24:27], v1
s_waitcnt lgkmcnt(0)
v_add_u32 v28, v24, v25
v_add_u32 v29, v28, v26
v_add_u32 v30, v29, v27
v_mov_b32 v31, v30
""")
    scan_add(a,31)
    a(f"""
v_sub_u32 v32, v31, v30
v_add_u32 v33, v32, v24
v_add_u32 v34, v32, v28
v_add_u32 v35, v32, v29
ds_write_b128 v1, v[32:35]
v_lshl_or_b32 v36, v24, 16, v32
v_lshl_or_b32 v37, v25, 16, v33
v_lshl_or_b32 v38, v26, 16, v34
v_lshl_or_b32 v39, v27, 16, v35
s_lshl_b32 s15, s2, 10
s_add_u32 s15, s15, {WS_TAB}
buffer_store_dwordx4 v[36:39], v1, s[24:27], s15 offen
s_waitcnt lgkmcnt(0)
K1_SKIPSCAN:
s_barrier
""")
    for i in range(4): a(f"ds_read_b32 v{24+i}, v{12+i}")
    for i in range(4):
        a(f"""s_waitcnt lgkmcnt({3-i})
v_add_lshl_u32 v{24+i}, v{24+i}, v{16+i}, 2""")
    for i in range(4):
        a(f"ds_write_b32 v{24+i}, v{4+i} offset:{K1_STAGE}")
    a(f"""
s_waitcnt lgkmcnt(0)
s_barrier
ds_read_b128 v[24:27], v1 offset:{K1_STAGE}
s_add_u32 s3, s3, {WS_REC}
s_waitcnt lgkmcnt(0)
buffer_store_dwordx4 v[24:27], v1, s[24:27], s3 offen
{LEAK1 if opt.get('leak') else ""}
s_endpgm
K1_WPREP:
s_waitcnt lgkmcnt(0)
""")
    xpf(a,opt)
    a(f"""
s_sub_u32 s15, s2, {NCH}
s_mul_i32 s15, s15, 13
s_add_u32 s15, s15, s14
s_cmp_ge_u32 s15, 34
s_cbranch_scc1 K1_END
s_waitcnt lgkmcnt(0)
""")
    srd(a,24,12,WS_SIZE)
    a(f"""
s_mov_b32 s16, s8
s_and_b32 s17, s9, 0xffff
s_mov_b32 s18, {144*128}
s_mov_b32 s19, 0x20000
s_cmp_ge_u32 s15, 10
s_cbranch_scc1 K1_W16
s_lshr_b32 s20, s15, 1
s_and_b32 s21, s15, 1
s_lshl_b32 s22, s20, 4
s_cmp_eq_u32 s20, 4
s_cselect_b32 s22, 128, s22
s_lshl_b32 s22, s22, 7
s_lshl_b32 s21, s21, 6
s_add_u32 s22, s22, s21
v_and_b32 v4, 31, v3
v_lshrrev_b32 v5, 5, v3
s_branch K1_WLOAD
K1_W16:
s_sub_u32 s20, s15, 10
s_mov_b32 s23, 64
s_cmp_ge_u32 s15, 18
s_cbranch_scc0 K1_W16B
s_sub_u32 s20, s15, 18
s_mov_b32 s23, 0
s_mov_b32 s16, s10
s_and_b32 s17, s11, 0xffff
s_mov_b32 s18, {128*128}
K1_W16B:
s_lshr_b32 s21, s20, 2
s_lshl_b32 s21, s21, 5
s_add_u32 s22, s21, s23
s_lshl_b32 s22, s22, 7
s_and_b32 s21, s20, 3
s_lshl_b32 s21, s21, 5
s_add_u32 s22, s22, s21
v_and_b32 v4, 15, v3
v_lshrrev_b32 v5, 4, v3
K1_WLOAD:
v_lshlrev_b32 v4, 1, v4
v_lshl_add_u32 v4, v5, 10, v4
""")
    for j in range(8):
        a(f"buffer_load_ushort v{8+j}, v4, s[16:19], s22 offen offset:{j*128}")
    a("v_lshlrev_b32 v6, 4, v3\ns_lshl_b32 s15, s15, 10\ns_waitcnt vmcnt(0)")
    for j in range(4):
        a(f"v_lshl_or_b32 v{16+j}, v{9+2*j}, 16, v{8+2*j}")
    a("""buffer_store_dwordx4 v[16:19], v6, s[24:27], s15 offen
K1_END:""")
    return a.txt(), 40

NW=12
ROWB=768; NROW=52
KMAX=14; ROWK=49*32
GRIDB=22016; DSLOT=KMAX*ROWK
L_CNT=NROW*ROWB
L_BASE=L_CNT+NW*256
L_PERM=L_BASE+NW*256
L_XO=L_PERM+4096
L_EO=L_XO+GRIDB
L_STG=L_EO+GRIDB
STGW=5120
L_XOWN=L_STG+NW*STGW
K2_LDS=L_XOWN+56*128
AGGB_STRIDE=144
XPAD=0x7fffff80
EPAD=0x7fffffe0
PERM_DUMMY=DSLOT|((49*ROWB)<<16)
assert GRIDB%256==0 and L_XO%32==0 and DSLOT+32<=GRIDB and K2_LDS<=163840
SWZ=4

def k2(opt):
    a=A()
    DBG=opt.get('dbg')
    def stamp(i, wait=False):
        if DBG:
            a(f"s_memrealtime s[{72+2*i}:{73+2*i}]")
            if i==5: a("s_memtime s[92:93]")
            if i==8: a("s_memtime s[94:95]")
            if wait: a("s_waitcnt lgkmcnt(0)")
    PA1=2; PA3=3; CX=4; CE=5; N8=6; CDX=7; CDE=8; AR=9; P1=14; EOr=15; P3=16; SX=18; SY=20; AXA=22; AEA=23
    XOr=24; QB=28; AX=36; AE=52; NP=56; T=64; PT=80; FT=84; D0=88; D1=104; WB=120
    REC=36; XOF=48; CA=60; LR=72; B4=84; TMP=96
    MK=44
    a(f"""
s_cmp_ge_u32 s2, 256
s_cbranch_scc1 K2_END""")
    stamp(0)
    if opt.get('leak'): a("s_memrealtime s[72:73]")
    a(f"""
s_load_dwordx4 s[4:7], s[0:1], 0
s_load_dwordx2 s[8:9], s[0:1], 48
s_load_dwordx2 s[10:11], s[0:1], 64
s_and_b32 s40, s2, 7
s_lshl_b32 s12, s40, 5
s_lshr_b32 s41, s2, 3
s_or_b32 s12, s12, s41
v_lshrrev_b32 v{TMP}, 6, v0
v_and_b32 v1, 63, v0
v_readfirstlane_b32 s13, v{TMP}
s_mov_b32 s15, 0
v_mul_u32_u24 v{TMP+1}, 43, v1
v_lshrrev_b32 v{TMP+1}, 7, v{TMP+1}   ; l/3
v_mul_u32_u24 v{TMP+2}, 3, v{TMP+1}
v_sub_u32 v{TMP+2}, v1, v{TMP+2}
v_lshlrev_b32 v161, 2, v{TMP+2}       ; v161 = 4*sub
s_mul_i32 s3, s13, 21
v_add_u32 v160, s3, v{TMP+1}          ; v160 = segment
v_cmp_gt_u32 vcc, 63, v1
v_mov_b32 v{TMP+3}, 255
v_lshlrev_b32 v{TMP+4}, 4, v1         ; lane*16
v_cndmask_b32 v160, v{TMP+3}, v160, vcc
v_lshlrev_b32 v{TMP+5}, 10, v160
s_lshl_b32 s14, s12, 2
s_add_u32 s14, s14, {WS_TAB}
s_waitcnt lgkmcnt(0)""")
    stamp(1)
    srd(a,24,10,WS_SIZE)
    a(f"""
buffer_load_dword v{TMP+8}, v{TMP+5}, s[24:27], s14 offen
s_lshl_b32 s32, s13, 10
s_add_u32 m0, s32, {L_STG}
s_nop 0
buffer_load_dwordx4 v{TMP+4}, s[24:27], s32 offen lds""")
    srd(a,16,4,N*128); srd(a,20,6,E*32); srd(a,28,8,N*128)
    a(f"""
s_lshr_b32 s33, s13, 2                ; mt
s_and_b32 s34, s13, 3                 ; nt
v_and_b32 v162, 15, v1
v_lshrrev_b32 v163, 4, v1
s_lshl_b32 s35, s12, 7
s_lshl_b32 s36, s33, 19
s_add_u32 s68, s35, s36
s_add_u32 s69, s35, {3<<19}
v_lshrrev_b32 v164, 1, v162
v_xor_b32 v164, v164, v163
v_lshlrev_b32 v164, 4, v164
v_lshl_add_u32 v164, v162, 7, v164
v_add_u32 v164, {L_XOWN}, v164
v_mov_b32 v{T}, 0
v_mov_b32 v{T+1}, 0
v_mov_b32 v{T+2}, 0
v_mov_b32 v{T+3}, 0
v_lshrrev_b32 v{T+4}, 5, v0
v_mul_u32_u24 v{T+4}, {ROWB}, v{T+4}
v_and_b32 v{T+5}, 31, v0
v_lshl_add_u32 v{T+4}, v{T+5}, 4, v{T+4}
ds_write_b128 v{T+4}, v[{T}:{T+3}]
ds_write_b128 v{T+4}, v[{T}:{T+3}] offset:{24*ROWB}
s_cmp_ge_u32 s13, 2
s_cbranch_scc1 K2_Z3
ds_write_b128 v{T+4}, v[{T}:{T+3}] offset:{48*ROWB}
K2_Z3:
s_cmp_ge_u32 s13, 7
s_cbranch_scc1 K2_NOXO
v_lshrrev_b32 v{T+6}, 3, v1
s_lshl_b32 s3, s13, 2
v_lshrrev_b32 v{T+7}, 4, v1
v_add_u32 v{T+7}, s3, v{T+7}          ; row>>1
v_xor_b32 v{T+7}, v{T+7}, v1
v_and_b32 v{T+7}, 7, v{T+7}
v_lshlrev_b32 v{T+7}, 4, v{T+7}
v_lshl_add_u32 v{T+7}, v{T+6}, 15, v{T+7}
s_lshl_b32 s3, s13, 10
s_add_u32 m0, s3, {L_XOWN}
s_lshl_b32 s3, s13, 18
s_add_u32 s3, s3, s35
buffer_load_dwordx4 v{T+7}, s[16:19], s3 offen lds
K2_NOXO:
s_lshl_b32 s35, s13, 8
s_add_u32 s35, s35, {L_CNT}
K2_ROUND:
s_cmp_ge_u32 s13, 4
s_cbranch_scc1 K2_NOPF
v_lshlrev_b32 v{T+4}, 4, v0
v_mov_b32 v{T+12}, {PERM_DUMMY}
v_mov_b32 v{T+13}, v{T+12}
v_mov_b32 v{T+14}, v{T+12}
v_mov_b32 v{T+15}, v{T+12}
ds_write_b128 v{T+4}, v[{T+12}:{T+15}] offset:{L_PERM}
v_and_b32 v{T+5}, 7, v1
v_lshlrev_b32 v{T+5}, 2, v{T+5}
v_add_u32 v{T+5}, {L_XO+DSLOT}, v{T+5}
v_mov_b32 v{T+6}, {XPAD}
ds_write2st64_b32 v{T+5}, v{T+6}, v{T+6} offset0:0 offset1:{GRIDB//256}
K2_NOPF:
s_mov_b32 s39, 36                     ; R
s_mov_b32 s38, 0
s_cmp_eq_u32 s15, 0
s_cbranch_scc1 K2_FIRST
v_lshlrev_b32 v{TMP+5}, 10, v160
buffer_load_dword v{TMP+8}, v{TMP+5}, s[24:27], s14 offen
s_waitcnt vmcnt(0)
K2_FIRST:
v_cmp_gt_u32 vcc, {NCH}, v160
v_mul_u32_u24 v165, {CH}, v160        ; chunk*CH
v_mov_b32 v{TMP+10}, 0x7ffffff0
s_mov_b32 s3, {WS_REC}
s_cmp_lt_u32 s13, 7
s_cbranch_scc1 K2_TW2
s_waitcnt vmcnt(1)
K2_TW2:
s_waitcnt vmcnt(2)""")
    stamp(2)
    a(f"""
v_cndmask_b32 v{TMP+8}, 0, v{TMP+8}, vcc
v_lshrrev_b32 v166, 16, v{TMP+8}      ; count
v_and_b32 v{TMP+8}, 0xffff, v{TMP+8}  ; start
v_subrev_u32 v166, s15, v166
v_add3_u32 v{TMP+8}, v{TMP+8}, v165, v161
v_add_lshl_u32 v{TMP+8}, v{TMP+8}, s15, 2
v_sub_u32 v{TMP+11}, v166, v161
v_cmp_lt_i32 vcc, 0, v{TMP+11}
v_cmp_lt_i32 s[40:41], 12, v{TMP+11}
v_cmp_lt_i32 s[36:37], 24, v{TMP+11}
v_cndmask_b32 v{TMP+12}, v{TMP+10}, v{TMP+8}, vcc
v_cndmask_b32 v{TMP+13}, v{TMP+10}, v{TMP+8}, s[40:41]
buffer_load_dwordx4 v[{REC}:{REC+3}], v{TMP+12}, s[24:27], s3 offen
v_cndmask_b32 v{TMP+14}, v{TMP+10}, v{TMP+8}, s[36:37]
buffer_load_dwordx4 v[{REC+4}:{REC+7}], v{TMP+13}, s[24:27], s3 offen offset:48
buffer_load_dwordx4 v[{REC+8}:{REC+11}], v{TMP+14}, s[24:27], s3 offen offset:96
v_lshlrev_b32 v165, 5, v165
s_cmp_lg_u32 s15, 0
s_cbranch_scc1 K2_NOQ
""")
    a(f"""
v_add_u32 v{TMP+4}, {L_STG}, v{TMP+4}
s_waitcnt vmcnt(3)
s_barrier
""")
    for f in range(10): a(f"ds_read_b128 v[{WB+4*f}:{WB+4*f+3}], v{TMP+4} offset:{f*1024}")
    a(f"""
s_mul_i32 s42, s13, {STGW}
s_add_u32 s42, s42, {L_STG}
s_mov_b32 s70, 0xbfb8aa3b             ; -log2(e)
s_mov_b32 s71, 0xbfb8aa3b
s_mov_b32 s96, 0x30800000             ; 2^-30
s_mov_b32 s97, 0x30800000
v_and_b32 v{T+6}, 31, v1              ; m / n
v_lshrrev_b32 v{T+7}, 5, v1           ; h
v_lshlrev_b32 v{N8}, 3, v{T+6}
v_bfe_u32 v{T+8}, v{T+6}, 2, 1        ; h_m
v_lshrrev_b32 v{T+9}, 3, v{T+6}       ; [u c2]
v_lshl_or_b32 v{T+9}, v{T+8}, 2, v{T+9}   ; e' = [h_m u c2]
v_and_b32 v{T+10}, 3, v{T+6}          ; q
v_lshl_or_b32 v{T+11}, v{T+9}, 2, v{T+10} ; t
v_cmp_eq_u32 vcc, v{T+8}, v{T+7}
v_mov_b32 v{QB+6}, 0
v_mov_b32 v{QB+7}, 0
v_mov_b32 v{QB+4}, 0x3f803f80
v_cndmask_b32 v{QB+4}, 0, v{QB+4}, vcc
v_cmp_gt_u32 vcc, 16, v{T+6}
v_lshl_or_b32 v{T+12}, v{T+8}, 2, v{T+10} ; f(t) = q | h_m<<2
v_xor_b32 v{T+12}, v{T+12}, v{T+7}    ; f ^ h
v_cndmask_b32 v{QB+5}, v{QB+4}, 0, vcc
v_cndmask_b32 v{QB+4}, 0, v{QB+4}, vcc
v_lshlrev_b32 v{T+13}, 10, v{T+10}
v_lshl_add_u32 v{T+13}, v{T+9}, 7, v{T+13}
v_add_u32 v{T+13}, s42, v{T+13}
""")
    for s in range(4):
        a(f"""v_xor_b32 v{T+14}, {2*s}, v{T+12}
v_lshl_add_u32 v{AR+s}, v{T+14}, 4, v{T+13}""")
    a(f"""
v_bfe_u32 v{T+14}, v{T+11}, 3, 1
v_xor_b32 v{T+14}, v{T+14}, v{T+7}
v_lshlrev_b32 v{T+14}, 4, v{T+14}
v_lshl_add_u32 v{T+14}, v{T+11}, 5, v{T+14}
s_add_u32 s3, s42, 4096
v_add_u32 v{AR+4}, s3, v{T+14}
v_lshlrev_b32 v{T+14}, 2, v{T+7}
v_and_b32 v{T+15}, 7, v1
v_xor_b32 v{T+14}, v{T+14}, v{T+15}
v_lshlrev_b32 v{CDX}, 4, v{T+14}
v_lshrrev_b32 v{T+14}, 4, v1
v_xor_b32 v{T+14}, v{T+14}, v1
v_and_b32 v{T+14}, 1, v{T+14}
v_lshlrev_b32 v{CDE}, 4, v{T+14}
v_bfe_u32 v{T+14}, v1, 3, 1
v_lshlrev_b32 v{T+14}, 4, v{T+14}
v_add_u32 v{CX}, {L_XO}, v{T+14}
v_bfe_u32 v{T+14}, v1, 1, 3
v_lshlrev_b32 v{T+14}, 2, v{T+14}
v_add_u32 v{CE}, {L_EO}, v{T+14}
s_branch K2_MASKS
K2_NOQ:
s_waitcnt vmcnt(0)
K2_MASKS:
v_lshl_add_u32 v{TMP}, v1, 2, s35
v_mov_b32 v{TMP+1}, 0
ds_write_b32 v{TMP}, v{TMP+1}
v_min_i32 v{TMP+11}, s39, v166
v_sub_u32 v{TMP+11}, v{TMP+11}, v161
v_mov_b32 v{TMP+2}, 1
v_cmp_lt_i32 s[40:41], s39, v166
""")
    def blockC(lbl, body):
        a(f"s_cmp_eq_u64 s[{MK+16}:{MK+17}], 0\ns_cbranch_scc1 {lbl}")
        for i in range(8,12): body(i)
        a(f"{lbl}:")
    for i in range(12):
        a(f"v_cmp_lt_i32 s[{MK+2*i}:{MK+2*i+1}], {(i&3)+12*(i>>2)}, v{TMP+11}")
    a(f"""
s_cmp_lg_u32 s38, 0
s_cbranch_scc1 K2_CNT2
s_waitcnt vmcnt(0)""")
    stamp(3)
    def cnt1(i):
        a(f"""s_mov_b64 exec, s[{MK+2*i}:{MK+2*i+1}]
v_bfe_u32 v{CA+i}, v{REC+i}, 12, 6
v_lshl_add_u32 v{CA+i}, v{CA+i}, 2, s35
ds_add_rtn_u32 v{LR+i}, v{CA+i}, v{TMP+2}""")
    for i in range(8): cnt1(i)
    blockC("K2_C0", cnt1)
    a("s_branch K2_CNTD\nK2_CNT2:")
    def cnt(i):
        a(f"""s_mov_b64 exec, s[{MK+2*i}:{MK+2*i+1}]
ds_add_rtn_u32 v{LR+i}, v{CA+i}, v{TMP+2}""")
    for i in range(4): cnt(i)
    a(f"""
K2_CNTD:
s_mov_b64 exec, s[40:41]
v_mov_b32 v{TMP+3}, s35
ds_add_u32 v{TMP+3}, v{TMP+2} offset:252
s_mov_b64 exec, -1
s_cmp_lg_u32 s38, 0
s_cbranch_scc1 K2_NOUNP
s_mov_b32 s3, 0xffffff80
""")
    def unp2(i):
        a(f"""v_lshrrev_b32 v{XOF+i}, 11, v{REC+i}
v_and_b32 v{XOF+i}, s3, v{XOF+i}
v_and_b32 v{REC+i}, 0xfff, v{REC+i}
v_lshl_add_u32 v{REC+i}, v{REC+i}, 5, v165""")
    for i in range(8): unp2(i)
    blockC("K2_C2", unp2)
    if opt.get('epf'):
        nw_,nr_=[int(c) for c in opt['epf']]
        a(f"s_cmp_ge_u32 s13, {nw_}\ns_cbranch_scc1 K2_NOUNP\nv_mov_b32 v{TMP+3}, 0x7ffffff0")
        for i in range(nr_):
            a(f"""v_cndmask_b32 v{TMP+5}, v{TMP+3}, v{REC+i}, s[{MK+2*i}:{MK+2*i+1}]
buffer_load_dword v{TMP+23}, v{TMP+5}, s[20:23], 0 offen""")
    a(f"""
K2_NOUNP:
v_lshlrev_b32 v{TMP}, 2, v1
s_waitcnt lgkmcnt(0)
s_barrier""")
    stamp(4)
    PF=TMP+4
    for r in range(0,NW,2): a(f"ds_read2st64_b32 v[{PF+2+r}:{PF+3+r}], v{TMP} offset0:{L_CNT//256+r} offset1:{L_CNT//256+r+1}")
    a(f"""
v_mov_b32 v{PF+1}, 0
v_cmp_gt_u32 vcc, 63, v1
s_mov_b32 s3, 0x03000020
v_mul_lo_u32 v{TMP+1}, v1, s3         ; PJ
s_waitcnt lgkmcnt(0)
""")
    for r in range(1,NW): a(f"v_add_u32 v{PF+2+r}, v{PF+1+r}, v{PF+2+r}")
    TOT=PF+13; OC=TMP+18; BS=TMP+19; RED=TMP+20; NPD=167
    a(f"""
s_set_gpr_idx_on s13, gpr_idx(SRC0)
s_nop 1
v_mov_b32 v{BS}, v{PF+1}
s_set_gpr_idx_off
s_nop 1
v_readlane_b32 s36, v{TOT}, 63
v_cndmask_b32 v{TOT}, 0, v{TOT}, vcc
v_add_u32 v{OC}, 7, v{TOT}
v_lshrrev_b32 v{OC}, 3, v{OC}
v_lshlrev_b32 v{NPD}, 3, v{OC}
v_sub_u32 v{NPD}, v{NPD}, v{TOT}
s_cmp_lg_u32 s38, 0
s_cbranch_scc1 K2_DENSE
v_cmp_lt_u32 vcc, {KMAX}, v{OC}
v_lshlrev_b32 v{BS}, 2, v{BS}
v_add_u32 v{TMP+2}, s35, v{TMP}
s_cbranch_vccz K2_FAST
s_mov_b32 s38, 1
s_mov_b32 s39, 12
s_barrier
s_branch K2_MASKS
K2_DENSE:
v_mov_b32 v{RED}, v{OC}
""")
    scan_add(a,RED)
    a(f"""
s_nop 0
v_readlane_b32 s37, v{RED}, 63
v_sub_u32 v{RED}, v{RED}, v{OC}
v_lshl_add_u32 v{BS}, v{RED}, 3, v{BS}
v_lshl_add_u32 v{TOT}, v{RED}, 3, v{TOT}
v_lshlrev_b32 v{BS}, 2, v{BS}
v_add_u32 v{TMP+2}, s35, v{TMP}
ds_write_b32 v{TMP+2}, v{BS} offset:{L_BASE-L_CNT}
v_and_b32 v{TMP+1}, 0xffff0000, v{TMP+1}
s_mov_b32 s43, s13
K2_DL:
v_cmp_lt_u32 vcc, s43, v{OC}
s_cbranch_vccz K2_DLE
v_add_u32 v{TMP+3}, s43, v{RED}
v_lshl_or_b32 v{TMP+21}, v{TMP+3}, 5, v{TMP+1}
v_lshlrev_b32 v{TMP+3}, 2, v{TMP+3}
s_mov_b64 exec, vcc
ds_write_b32 v{TMP+3}, v{TMP+21} offset:{L_PERM}
s_mov_b64 exec, -1
s_add_u32 s43, s43, {NW}
s_branch K2_DL
K2_DLE:
s_mov_b32 s98, 32                     ; sK
s_mov_b32 s99, 0
v_mov_b32 v{TMP+22}, {L_XO}
s_branch K2_SCAT
K2_FAST:
ds_write_b32 v{TMP+2}, v{BS} offset:{L_BASE-L_CNT}
s_mov_b32 s98, {ROWK}
s_mov_b32 s99, 8
s_lshl_b32 s3, s35, 3
s_sub_u32 s3, {L_XO}, s3
v_mov_b32 v{TMP+22}, s3
K2_SCAT:
""")
    def look(i):
        a(f"""s_mov_b64 exec, s[{MK+2*i}:{MK+2*i+1}]
ds_read_b32 v{B4+i}, v{CA+i} offset:{L_BASE-L_CNT}""")
    for i in range(8): look(i)
    blockC("K2_C3", look)
    a(f"""
s_mov_b64 exec, -1
v_cmp_lt_u32 vcc, s13, v{NPD}
v_add_lshl_u32 v{PF+2}, v{TOT}, s13, 2
v_mad_u32_u24 v{PF+3}, v{TMP+2}, s99, v{TMP+22}
v_and_or_b32 v{PF+3}, v{PF+2}, 28, v{PF+3}
v_lshrrev_b32 v{PF+2}, 5, v{PF+2}
v_mad_u32_u24 v{PF+2}, v{PF+2}, s98, v{PF+3}
v_mov_b32 v{PF+3}, {XPAD}
s_mov_b64 exec, vcc
ds_write2st64_b32 v{PF+2}, v{PF+3}, v{PF+3} offset0:0 offset1:{GRIDB//256}
s_mov_b64 exec, -1
s_cmp_lg_u32 s38, 0
s_cbranch_scc1 K2_PERMDONE
s_mov_b32 s43, s13
K2_PL:
v_min_u32 v{RED}, s43, v{OC}
v_lshl_or_b32 v{RED}, v{OC}, 16, v{RED}
v_cmp_lt_u32 vcc, s43, v{OC}
""")
    scan_add(a,RED)
    a(f"""
s_mul_i32 s3, s43, {ROWK}
v_readlane_b32 s37, v{RED}, 63
v_mbcnt_lo_u32_b32 v{TMP+3}, vcc_lo, 0
v_mbcnt_hi_u32_b32 v{TMP+3}, vcc_hi, v{TMP+3}
v_add_u32 v{TMP+21}, s3, v{TMP+1}
s_and_b32 s3, s37, 0xffff
s_lshr_b32 s37, s37, 16
v_add_lshl_u32 v{TMP+3}, v{TMP+3}, s3, 2
s_mov_b64 exec, vcc
ds_write_b32 v{TMP+3}, v{TMP+21} offset:{L_PERM}
s_mov_b64 exec, -1
s_add_u32 s43, s43, {NW}
v_cmp_lt_u32 vcc, s43, v{OC}
s_cbranch_vccnz K2_PL
K2_PERMDONE:
s_waitcnt lgkmcnt(0)
""")
    def scat(i):
        a(f"""s_mov_b64 exec, s[{MK+2*i}:{MK+2*i+1}]
v_lshl_add_u32 v{B4+i}, v{LR+i}, 2, v{B4+i}
v_mad_u32_u24 v{LR+i}, v{CA+i}, s99, v{TMP+22}
v_and_or_b32 v{LR+i}, v{B4+i}, 28, v{LR+i}
v_lshrrev_b32 v{B4+i}, 5, v{B4+i}
v_mad_u32_u24 v{B4+i}, v{B4+i}, s98, v{LR+i}
ds_write2st64_b32 v{B4+i}, v{XOF+i}, v{REC+i} offset0:0 offset1:{GRIDB//256}""")
    for i in range(8): scat(i)
    blockC("K2_C4", scat)
    if opt.get('epf2'):
        w0,w1,nr_=[int(c) for c in opt['epf2']]
        a(f"s_mov_b64 exec, -1\ns_cmp_lt_u32 s13, {w0}\ns_cbranch_scc1 K2_NOEPF2\ns_cmp_ge_u32 s13, {w1}\ns_cbranch_scc1 K2_NOEPF2\nv_mov_b32 v{TMP+3}, 0x7ffffff0")
        for i in range(nr_):
            a(f"""v_cndmask_b32 v{TMP+5}, v{TMP+3}, v{REC+i}, s[{MK+2*i}:{MK+2*i+1}]
buffer_load_dword v{TMP+23}, v{TMP+5}, s[20:23], 0 offen""")
        a("K2_NOEPF2:")
    a(f"""
s_mov_b64 exec, -1
s_cmp_lg_u32 s15, 0
s_cbranch_scc1 K2_WDONE
v_lshlrev_b32 v{TMP}, 4, v1
s_lshl_b32 s3, s34, 10
s_add_u32 s40, s3, {WS_W2}
s_add_u32 s41, s3, {WS_W2+4096}
buffer_load_dwordx4 v[{D1}:{D1+3}], v{TMP}, s[24:27], s40 offen
buffer_load_dwordx4 v[{D1+4}:{D1+7}], v{TMP}, s[24:27], s41 offen
K2_WDONE:
s_add_u32 s37, s37, 3
s_lshr_b32 s37, s37, 2                ; ngroups
s_lshl_b32 s3, s13, 4
s_add_u32 s3, s3, {L_PERM}
v_lshrrev_b32 v{TMP+1}, 4, v1
v_lshl_add_u32 v{PA1}, v{TMP+1}, 2, s3
v_lshrrev_b32 v{TMP+1}, 5, v1
v_lshl_add_u32 v{PA3}, v{TMP+1}, 3, s3
s_add_u32 s43, s42, 1024
s_add_u32 s44, s42, 2048
s_add_u32 s45, s42, 3072
s_add_u32 s46, s42, 4096
s_mov_b32 s52, s13
s_waitcnt lgkmcnt(0)
s_barrier""")
    stamp(5)
    GS=NW*16
    SD="dst_sel:DWORD dst_unused:UNUSED_PAD"
    def idx_addr():
        return [f"v_add_u32_sdwa v{AXA}, v{P1}, v{CX} {SD} src0_sel:WORD_0 src1_sel:DWORD",
                f"v_add_u32_sdwa v{AEA}, v{P1}, v{CE} {SD} src0_sel:WORD_0 src1_sel:DWORD"]
    def idx_read():
        return [f"ds_read_b128 v[{XOr}:{XOr+3}], v{AXA}", f"ds_read_b32 v{EOr}, v{AEA}"]
    def sy_calc():
        return [f"v_add_u32_sdwa v{SY}, v{P3}, v{N8} {SD} src0_sel:WORD_1 src1_sel:DWORD",
                f"v_add_u32_sdwa v{SY+1}, v{P3+1}, v{N8} {SD} src0_sel:WORD_1 src1_sel:DWORD"]
    def q_ax_read():
        l=[f"ds_read_b128 v[{AE}:{AE+3}], v{AR+4}",
           f"ds_read_b32 v{QB}, v{SY} offset:512", f"ds_read_b32 v{QB+1}, v{SY+1} offset:512",
           f"ds_read_b32 v{QB+2}, v{SY} offset:516", f"ds_read_b32 v{QB+3}, v{SY+1} offset:516"]
        l+=[f"ds_read_b128 v[{AX+4*s}:{AX+4*s+3}], v{AR+s}" for s in range(4)]
        return l
    def issue_loads(lbl):
        a(f"s_cmp_ge_u32 s52, s37\ns_cbranch_scc1 {lbl}")
        a(f"""s_mov_b32 m0, s46
v_add_u32 v{EOr}, v{EOr}, v{CDE}
{"" if opt.get('noe') else f"buffer_load_dwordx4 v{EOr}, s[20:23], 0 offen lds {opt.get('epol','')}"}""")
        for q in range(4):
            a(f"""s_mov_b32 m0, s{42+q}
v_xad_u32 v{XOr+q}, v{CDX}, {16*q}, v{XOr+q}
{"" if opt.get('nox') else f"buffer_load_dwordx4 v{XOr+q}, s[16:19], 0 offen lds"}""")
        a(f"{lbl}:\ns_add_u32 s52, s52, {NW}")
    W=lambda s,t: f"v[{WB+4*(2*s+t)}:{WB+4*(2*s+t)+3}]"
    Dr=lambda t: (D0 if t==0 else D1)
    Dt=lambda t: f"v[{Dr(t)}:{Dr(t)+15}]"
    MF="v_mfma_f32_32x32x16_bf16"
    def mfmas(t):
        l=[f"{MF} {Dt(t)}, v[{AE}:{AE+3}], {W(4,t)}, 0",
           f"{MF} {Dt(t)}, v[{QB+4}:{QB+7}], v[{QB+2*t}:{QB+2*t+3}], {Dt(t)}"]
        l+=[f"{MF} {Dt(t)}, v[{AX+4*s}:{AX+4*s+3}], {W(s,t)}, {Dt(t)}" for s in range(4)]
        return l
    def P(r): return f"v[{r}:{r+1}]"
    def scale(t): return [f"v_pk_mul_f32 {P(T+2*i)}, {P(Dr(t)+2*i)}, s[70:71]" for i in range(8)]
    def exps(): return [f"v_exp_f32 v{T+i}, v{T+i}" for i in range(16)]
    def rcps(): return [f"v_rcp_f32 v{NP+4*o+2+i}, v{NP+4*o+2+i}" for o in range(2) for i in range(2)]
    def flush(tile):
        l=[f"v_mul_f32 v{NP+4*o}, v{NP+4*o}, v{NP+4*o+2}" for o in range(2)]
        l+=[f"v_fmac_f32 v{NP+4*o}, v{NP+4*o+1}, v{NP+4*o+3}" for o in range(2)]
        l+=[f"v_cvt_f64_f32 {P(FT+2*o)}, v{NP+4*o}" for o in range(2)]
        l+=[f"ds_add_f64 v{SX+o}, {P(FT+2*o)} offset:{256*tile}" for o in range(2)]
        return l
    def pkphase(t):
        seq=[]
        for o in range(2):
            z=Dr(t)+8*o; tt=T+8*o; p=P(PT+2*o); Nn=P(NP+4*o); Pq=P(NP+4*o+2)
            A_,B_,C_,D_=[P(z+2*i) for i in range(4)]
            tA,tB,tC,tD=[P(tt+2*i) for i in range(4)]
            s=[[f"v_pk_fma_f32 {P(tt+2*i)}, {P(tt+2*i)}, s[96:97], s[96:97] clamp" for i in range(4)],
               [f"v_pk_mul_f32 {p}, {tA}, {tB}", f"v_pk_mul_f32 {A_}, {A_}, {tB}", f"v_pk_mul_f32 {C_}, {C_}, {tD}"],
               [f"v_pk_fma_f32 {A_}, {B_}, {tA}, {A_}", f"v_pk_fma_f32 {C_}, {D_}, {tC}, {C_}", f"v_pk_mul_f32 {B_}, {tC}, {tD}"],
               [f"v_pk_mul_f32 {A_}, {A_}, {B_}", f"v_pk_mul_f32 {Pq}, {p}, {B_}"],
               [f"v_pk_fma_f32 {Nn}, {C_}, {p}, {A_}"]]
            seq.append(s)
        l=[]
        for st in range(5):
            for o in range(2): l+=seq[o][st]
        return l
    def weave(mf, tr, rest):
        out=[]; tr=list(tr)
        for m in mf:
            out.append(m); out+=tr[:3]; tr=tr[3:]
        return out+tr+rest
    emit=lambda l: [a(x) for x in l]
    NOV=opt.get('novalu')
    a(f"""
s_cmp_ge_u32 s52, s37
s_cbranch_scc1 K2_CORR
ds_read_b32 v{P1}, v{PA1}
ds_read_b64 v[{P3}:{P3+1}], v{PA3}
s_waitcnt lgkmcnt(0)""")
    emit(idx_addr()); emit(idx_read()); emit(sy_calc())
    a(f"ds_read_b32 v{P1}, v{PA1} offset:{GS}\nds_read_b64 v[{P3}:{P3+1}], v{PA3} offset:{GS}\ns_waitcnt lgkmcnt(0)")
    issue_loads("K2_IL0")
    emit(idx_addr()); emit(idx_read())
    a(f"ds_read_b32 v{P1}, v{PA1} offset:{2*GS}")
    a(f"v_add_u32 v{PA1}, {3*GS}, v{PA1}\nv_add_u32 v{PA3}, {2*GS}, v{PA3}")
    a(f"""
K2_CORR:
s_cmp_lg_u32 s15, 0
s_cbranch_scc1 K2_NOQ2
s_lshl_b32 s3, s33, 11
v_add_u32 v{T}, s3, v164
v_xor_b32 v{T+1}, 64, v{T}
v_xor_b32 v{T+2}, 64, v164
ds_read_b128 v[{AX}:{AX+3}], v{T}
ds_read_b128 v[{AX+8}:{AX+11}], v164 offset:{48*128}
ds_read_b128 v[{AX+4}:{AX+7}], v{T+1}
ds_read_b128 v[{AX+12}:{AX+15}], v{T+2} offset:{48*128}
v_mul_u32_u24 v{T+3}, {4*ROWB}, v163
v_lshl_add_u32 v{T+3}, v162, 3, v{T+3}
s_and_b32 s40, s34, 1
s_lshl_b32 s40, s40, 7
s_lshr_b32 s41, s34, 1
s_lshl_b32 s41, s41, 2
s_add_u32 s40, s40, s41
v_add_u32 v{T+4}, s40, v{T+3}
s_mul_i32 s41, s33, {16*ROWB}
v_add_u32 v{T+3}, s41, v{T+4}
v_cmp_gt_u32 vcc, 16, v1
s_cmp_ge_u32 s13, s37
s_cbranch_scc1 K2_QW0
s_waitcnt vmcnt(5)
s_branch K2_QW1
K2_QW0:
s_waitcnt vmcnt(0)
K2_QW1:
s_waitcnt lgkmcnt(0)
v_mfma_f32_16x16x32_bf16 v[{D0}:{D0+3}], v[{AX}:{AX+3}], v[{D1}:{D1+3}], 0
v_mfma_f32_16x16x32_bf16 v[{D0+4}:{D0+7}], v[{AX+8}:{AX+11}], v[{D1}:{D1+3}], 0
v_mfma_f32_16x16x32_bf16 v[{D0}:{D0+3}], v[{AX+4}:{AX+7}], v[{D1+4}:{D1+7}], v[{D0}:{D0+3}]
v_mfma_f32_16x16x32_bf16 v[{D0+4}:{D0+7}], v[{AX+12}:{AX+15}], v[{D1+4}:{D1+7}], v[{D0+4}:{D0+7}]
s_nop 7
""")
    for i in range(8):
        q=D0+i; h=D0+8+i; l=T+5
        a(f"""v_cvt_pk_bf16_f32 v{h}, v{q}, v{q}
v_lshlrev_b32 v{l}, 16, v{h}
v_sub_f32 v{l}, v{q}, v{l}
v_cvt_pk_bf16_f32 v{h}, v{q}, v{l}""")
    for i in range(4): a(f"ds_write_b32 v{T+3}, v{D0+8+i} offset:{512+i*ROWB}")
    a("s_and_saveexec_b64 s[40:41], vcc")
    for i in range(4): a(f"ds_write_b32 v{T+4}, v{D0+12+i} offset:{512+(48+i)*ROWB}")
    a(f"""
s_mov_b64 exec, s[40:41]
s_waitcnt lgkmcnt(0)
s_barrier
K2_NOQ2:
v_and_b32 v{T}, 31, v1
v_lshlrev_b32 v{T}, 3, v{T}
v_lshrrev_b32 v{T+1}, 5, v1
v_lshl_add_u32 v{T}, v{T+1}, 2, v{T}
s_mul_i32 s3, s13, {ROWB}
v_add_u32 v{T}, s3, v{T}              ; q address
v_lshl_add_u32 v{T+1}, v1, 3, s3
v_cvt_f32_u32 v{T+2}, v{NPD}
v_mul_f32 v{T+2}, 0xce800000, v{T+2}  ; -npad * 2^30
s_mov_b32 s47, 0xffff0000
""")
    for i in range(5): a(f"ds_read_b32 v{D0+i}, v{T} offset:{512+12*i*ROWB}")
    for i in range(5): a(f"s_add_u32 s3, s13, {12*i}\ns_nop 0\nv_readlane_b32 s{53+i}, v{T+2}, s3")
    a("s_waitcnt lgkmcnt(0)")
    for i in range(5): a(f"v_lshlrev_b32 v{D0+5+i}, 16, v{D0+i}\nv_and_b32 v{D0+i}, s47, v{D0+i}\nv_add_f32 v{D0+i}, v{D0+i}, v{D0+5+i}")
    for i in range(5): a(f"v_mul_f32 v{D0+5+i}, s70, v{D0+i}")
    for i in range(5): a(f"v_exp_f32 v{D0+5+i}, v{D0+5+i}")
    for i in range(5): a(f"v_add_f32 v{D0+5+i}, 1.0, v{D0+5+i}")
    for i in range(5): a(f"v_rcp_f32 v{D0+5+i}, v{D0+5+i}")
    for i in range(5): a(f"v_mul_f32 v{D0+i}, s{53+i}, v{D0+i}")
    for i in range(5): a(f"v_mul_f32 v{D0+i}, v{D0+i}, v{D0+5+i}")
    for i in range(5): a(f"v_cvt_f64_f32 {P(D1+2*i)}, v{D0+i}")
    for i in range(4): a(f"ds_add_f64 v{T+1}, {P(D1+2*i)} offset:{12*i*ROWB}")
    a(f"""
s_cmp_lg_u32 s13, 0
s_cbranch_scc1 K2_CORR2
ds_add_f64 v{T+1}, {P(D1+8)} offset:{48*ROWB}
K2_CORR2:
s_cmp_ge_u32 s13, s37
s_cbranch_scc1 K2_LOOPEND
v_mov_b32 v{NP}, 0
v_mov_b32 v{NP+1}, 0
v_mov_b32 v{NP+2}, 1.0
v_mov_b32 v{NP+3}, 1.0
v_mov_b32 v{NP+4}, 0
v_mov_b32 v{NP+5}, 0
v_mov_b32 v{NP+6}, 1.0
v_mov_b32 v{NP+7}, 1.0
v_mov_b32 v{SX}, v{SY}
v_mov_b32 v{SX+1}, v{SY+1}
s_mov_b32 s48, s13
s_waitcnt vmcnt(0)""")
    stamp(6)
    emit(q_ax_read())
    a("s_waitcnt lgkmcnt(0)")
    issue_loads("K2_IL1")
    emit(mfmas(0))
    a("s_nop 11")
    emit(scale(0))
    a("K2_LOOP:")
    if opt.get('prio'):
        t1,t2,t3=[int(c) for c in opt['prio']]
        a(f"""s_sub_u32 s3, s37, s48
s_cmp_gt_u32 s3, {t3*NW}
s_cbranch_scc1 K2_P3
s_cmp_gt_u32 s3, {t2*NW}
s_cbranch_scc1 K2_P2
s_cmp_gt_u32 s3, {t1*NW}
s_cbranch_scc1 K2_P1
s_setprio 0
s_branch K2_PD
K2_P1:
s_setprio 1
s_branch K2_PD
K2_P2:
s_setprio 2
s_branch K2_PD
K2_P3:
s_setprio 3
K2_PD:""")
    restA=flush(1)+[f"v_mov_b32 v{SX}, v{SY}", f"v_mov_b32 v{SX+1}, v{SY+1}"]+sy_calc()+idx_addr()+idx_read()+[
        f"ds_read_b32 v{P1}, v{PA1}", f"ds_read_b64 v[{P3}:{P3+1}], v{PA3}",
        f"v_add_u32 v{PA1}, {GS}, v{PA1}", f"v_add_u32 v{PA3}, {GS}, v{PA3}"]
    emit(weave(mfmas(1), [] if NOV else rcps()+exps(), restA))
    a("s_waitcnt vmcnt(0)")
    emit(q_ax_read())
    if not NOV: emit(pkphase(0)); emit(scale(1))
    else: a("s_nop 7")
    a("s_waitcnt lgkmcnt(0)")
    issue_loads("K2_IL2")
    emit(weave(mfmas(0), [] if NOV else rcps()+exps(), flush(0)))
    if not NOV: emit(pkphase(1)); emit(scale(0))
    else: a("s_nop 7")
    a(f"""
s_add_u32 s48, s48, {NW}
s_cmp_lt_u32 s48, s37
s_cbranch_scc1 K2_LOOP""")
    emit(rcps()); a("s_nop 0"); emit(flush(1))
    a(f"""
K2_LOOPEND:
s_waitcnt vmcnt(0)
s_cmp_eq_u32 s36, 0
s_cbranch_scc1 K2_EPI
s_add_u32 s15, s15, s39
s_waitcnt lgkmcnt(0)
s_barrier
s_branch K2_ROUND
K2_EPI:""")
    stamp(7)
    XA=36; WU=52; GB=68
    a(f"""
s_lshl_b32 s3, s33, 11
v_add_u32 v8, s3, v164
v_xor_b32 v9, 64, v8
v_xor_b32 v10, 64, v164
ds_read_b128 v[{XA}:{XA+3}], v8
ds_read_b128 v[{XA+4}:{XA+7}], v9
ds_read_b128 v[{XA+8}:{XA+11}], v164 offset:{48*128}
ds_read_b128 v[{XA+12}:{XA+15}], v10 offset:{48*128}
v_lshlrev_b32 v2, 4, v1
s_lshl_b32 s36, s34, 10
""")
    for s in range(4):
        a(f"s_add_u32 s37, s36, {WS_WU+4096*s}\nbuffer_load_dwordx4 v[{WU+4*s}:{WU+4*s+3}], v2, s[24:27], s37 offen")
    a(f"""
s_mul_i32 s3, s13, {ROWB}
v_lshl_add_u32 v3, v1, 3, s3
s_mul_i32 s3, s13, {AGGB_STRIDE}
s_add_u32 s3, s3, {L_STG}
v_lshl_add_u32 v4, v1, 1, s3
v_mul_u32_u24 v5, {AGGB_STRIDE}, v162
v_lshl_add_u32 v5, v163, 4, v5
v_add_u32 v5, {L_STG}, v5
s_mul_i32 s3, s33, {16*AGGB_STRIDE}
v_add_u32 v6, s3, v5
v_lshlrev_b32 v7, 15, v162
v_lshl_add_u32 v7, v163, 3, v7
s_lshl_b32 s36, s34, 5
s_add_u32 s68, s68, s36
s_add_u32 s69, s69, s36
s_mov_b32 s3, 0xffff0000
s_waitcnt lgkmcnt(0)
s_barrier""")
    stamp(8)
    for i in range(5): a(f"ds_read_b64 {P(D0+2*i)}, v3 offset:{12*i*ROWB}")
    for i in range(5): a(f"s_waitcnt lgkmcnt({4-i if not DBG else 0})\nv_cvt_f32_f64 v{D1+i}, {P(D0+2*i)}")
    for i in range(5): a(f"v_mul_f32 v{D1+i}, s96, v{D1+i}")
    for i in range(5): a(f"v_cvt_pk_bf16_f32 v{D1+i}, v{D1+i}, v{D1+i}")
    for i in range(5): a(f"ds_write_b16 v4, v{D1+i} offset:{12*i*AGGB_STRIDE}")
    M16="v_mfma_f32_16x16x32_bf16"
    a(f"""
s_waitcnt vmcnt(0)
{M16} v[{D0}:{D0+3}], v[{WU}:{WU+3}], v[{XA}:{XA+3}], 0
{M16} v[{D0+4}:{D0+7}], v[{WU}:{WU+3}], v[{XA+8}:{XA+11}], 0
{M16} v[{D0}:{D0+3}], v[{WU+4}:{WU+7}], v[{XA+4}:{XA+7}], v[{D0}:{D0+3}]
{M16} v[{D0+4}:{D0+7}], v[{WU+4}:{WU+7}], v[{XA+12}:{XA+15}], v[{D0+4}:{D0+7}]
s_waitcnt lgkmcnt(0)
s_barrier
ds_read_b128 v[{GB}:{GB+3}], v6
ds_read_b128 v[{GB+4}:{GB+7}], v5 offset:{48*AGGB_STRIDE}
ds_read_b128 v[{GB+8}:{GB+11}], v6 offset:64
ds_read_b128 v[{GB+12}:{GB+15}], v5 offset:{48*AGGB_STRIDE+64}
s_waitcnt lgkmcnt(2)
{M16} v[{D0}:{D0+3}], v[{WU+8}:{WU+11}], v[{GB}:{GB+3}], v[{D0}:{D0+3}]
{M16} v[{D0+4}:{D0+7}], v[{WU+8}:{WU+11}], v[{GB+4}:{GB+7}], v[{D0+4}:{D0+7}]
s_waitcnt lgkmcnt(0)
{M16} v[{D0}:{D0+3}], v[{WU+12}:{WU+15}], v[{GB+8}:{GB+11}], v[{D0}:{D0+3}]
{M16} v[{D0+4}:{D0+7}], v[{WU+12}:{WU+15}], v[{GB+12}:{GB+15}], v[{D0+4}:{D0+7}]
s_nop 7
""")
    for i in range(4): a(f"v_cvt_pk_bf16_f32 v{D1+i}, v{D0+2*i}, v{D0+2*i+1}")
    for i in range(4): a(f"v_lshlrev_b32 v{D0+2*i}, 16, v{D1+i}\nv_and_b32 v{D0+2*i+1}, s3, v{D1+i}")
    for i in range(8): a(f"v_mul_f32 v{D0+8+i}, s70, v{D0+i}")
    for i in range(8): a(f"v_exp_f32 v{D0+8+i}, v{D0+8+i}")
    for i in range(8): a(f"v_add_f32 v{D0+8+i}, 1.0, v{D0+8+i}")
    for i in range(8): a(f"v_rcp_f32 v{D0+8+i}, v{D0+8+i}")
    for i in range(8): a(f"v_mul_f32 v{D0+8+i}, v{D0+i}, v{D0+8+i}")
    for i in range(4): a(f"v_cvt_pk_bf16_f32 v{D1+i}, v{D0+8+2*i}, v{D0+9+2*i}")
    a(f"""
buffer_store_dwordx2 v[{D1}:{D1+1}], v7, s[28:31], s68 offen
s_cmp_ge_u32 s13, 4
s_cbranch_scc1 K2_NOST
buffer_store_dwordx2 v[{D1+2}:{D1+3}], v7, s[28:31], s69 offen
K2_NOST:""")
    if DBG:
        a("s_waitcnt vmcnt(0)"); stamp(9,True)
        a("s_mov_b32 s26, 0x10000000\ns_lshl_b32 s3, s2, 4\ns_add_u32 s3, s3, s13\ns_lshl_b32 s3, s3, 7\ns_add_u32 s3, s3, 0x800000\nv_mov_b32 v2, 0")
        for i in range(6):
            for j in range(4): a(f"v_mov_b32 v{4+j}, s{72+4*i+j}")
            a(f"buffer_store_dwordx4 v[4:7], v2, s[24:27], s3 offen offset:{16*i}\ns_nop 1")
    if opt.get('leak'): a(leak(72,2048).replace("buffer_atomic_umin","buffer_store_dword").replace("buffer_atomic_umax","buffer_store_dword"))
    a("K2_END:")
    return a.txt(), 168

def kd(name, nv):
    return f""".amdhsa_kernel {name}
  .amdhsa_next_free_vgpr {nv}
  .amdhsa_next_free_sgpr 102
  .amdhsa_accum_offset {(nv+3)//4*4}
  .amdhsa_group_segment_fixed_size 0
  .amdhsa_kernarg_size 72
  .amdhsa_user_sgpr_count 2
  .amdhsa_user_sgpr_kernarg_segment_ptr 1
  .amdhsa_system_sgpr_workgroup_id_x 1
  .amdhsa_float_denorm_mode_32 3
.end_amdhsa_kernel
"""
def build(opt):
    b1,n1=k1(opt); b2,n2=k2(opt)
    lk=opt.get('leak','00')
    def red(arr, dst):
        op="min" if arr in (0,2) else "max"
        t=f"buffer_load_dwordx4 v[4:7], v1, s[8:11], s3 offen offset:{arr*1024}\ns_waitcnt vmcnt(0)\n"
        t+=f"v_{op}_u32 v4, v4, v5\nv_{op}_u32 v6, v6, v7\nv_{op}_u32 v4, v4, v6\n"
        for sh in (1,2,4,8): t+=f"s_nop 1\nv_{op}_u32_dpp v4, v4, v4 row_shr:{sh} row_mask:0xf bank_mask:0xf\n"
        t+=f"s_nop 1\nv_{op}_u32_dpp v4, v4, v4 row_bcast:15 row_mask:0xa bank_mask:0xf\ns_nop 1\nv_{op}_u32_dpp v4, v4, v4 row_bcast:31 row_mask:0xc bank_mask:0xf\n"
        t+=f"s_nop 1\nv_readlane_b32 s{dst}, v4, 63\n"
        return t
    K3=""".globl mpnn_leak_kernel
.p2align 8
.type mpnn_leak_kernel,@function
mpnn_leak_kernel:
s_cmp_lg_u32 s2, 0
s_cbranch_scc1 K3_END
s_memrealtime s[20:21]
s_load_dwordx2 s[4:5], s[0:1], 64
v_min_u32 v1, 61, v0
v_lshlrev_b32 v1, 4, v1
s_mov_b32 s3, 0x900000
s_waitcnt lgkmcnt(0)
s_mov_b32 s8, s4
s_and_b32 s9, s5, 0xffff
s_mov_b32 s10, 0x10000000
s_mov_b32 s11, 0x20000
"""
    if lk!='none' and opt.get('leak'):
        K3+=red(int(lk[0]),12)
        K3+=(red(int(lk[1]),13) if lk[1]!='4' else "s_mov_b32 s13, s20\n")
        K3+="""s_nop 3
s_sub_u32 s14, s13, s12
s_min_u32 s14, s14, 10000
s_lshl_b32 s14, s14, 2
"""
    else:
        K3+=red(0,12)+red(1,13)+"s_mov_b32 s14, 0\n"
    K3+="""s_memrealtime s[16:17]
s_waitcnt lgkmcnt(0)
K3_L:
s_memrealtime s[18:19]
s_waitcnt lgkmcnt(0)
s_sub_u32 s15, s18, s16
s_cmp_lt_u32 s15, s14
s_cbranch_scc1 K3_L
K3_END:
s_endpgm
"""
    s=f"""; MPNN edge-MLP: K1 partitions edges by destination bucket (and re-lays-out weights), K2 does everything else.
; @launch kernel=mpnn_part_kernel grid=({K1_GRID},1,1) block=({K1_BLOCK},1,1) lds={K1_LDS}
; @launch kernel=mpnn_main_kernel grid=(256,1,1) block=({NW*64},1,1) lds={K2_LDS}
{"; @launch kernel=mpnn_leak_kernel grid=(1,1,1) block=(64,1,1) lds=0"+chr(10) if opt.get('leak') else ""}.amdgcn_target "amdgcn-amd-amdhsa--gfx950"
.text
.globl mpnn_part_kernel
.p2align 8
.type mpnn_part_kernel,@function
mpnn_part_kernel:
{b1}    s_endpgm
.globl mpnn_main_kernel
.p2align 8
.type mpnn_main_kernel,@function
mpnn_main_kernel:
{b2}    s_endpgm
{K3 if opt.get('leak') else ""}.section .rodata,"a"
{(".p2align 6"+chr(10)+kd('mpnn_leak_kernel',16)) if opt.get('leak') else ""}.p2align 6
{kd('mpnn_part_kernel',n1)}.p2align 6
{kd('mpnn_main_kernel',n2)}"""
    return s
if __name__=="__main__":
    out=sys.argv[1] if len(sys.argv)>1 else "standalone__mpnn_edge_mlp__graph.s"
    opt=dict(kv.split("=",1) for kv in sys.argv[2:])
    open(out,"w").write(build(opt))
    print("SWZ",SWZ,"K2_LDS",K2_LDS)
```

```python
import sys
N=12500; E=800000; CH=3200; NCH=250
WS_WM=0; WS_W2=10240; WS_WU=18432; WS_TAB=65536; WS_REC=524288
WS_SIZE=WS_REC+E*4+4096

class A:
    def __init__(s): s.l=[]
    def __call__(s, txt):
        for ln in txt.strip("\n").split("\n"):
            ln=ln.strip()
            if ln: s.l.append(("" if ln.endswith(":") else "    ")+ln)
    def txt(s): return "\n".join(s.l)+"\n"

def srd(a,d,b,n):
    a(f"""s_mov_b32 s{d}, s{b}
s_and_b32 s{d+1}, s{b+1}, 0xffff
s_mov_b32 s{d+2}, {n}
s_mov_b32 s{d+3}, 0x20000""")

def scan_add(a, v):
    for sh in (1,2,4,8):
        a(f"s_nop 1\nv_add_u32_dpp v{v}, v{v}, v{v} row_shr:{sh} row_mask:0xf bank_mask:0xf bound_ctrl:0")
    a(f"s_nop 1\nv_add_u32_dpp v{v}, v{v}, v{v} row_bcast:15 row_mask:0xa bank_mask:0xf")
    a(f"s_nop 1\nv_add_u32_dpp v{v}, v{v}, v{v} row_bcast:31 row_mask:0xc bank_mask:0xf")

K1_BLOCK=832
K1_GRID=256
K1_STAGE=1024
K1_LDS=1024+CH*4
def xpf(a,opt):
    if not opt.get('xpf'): return
    srd(a,36,32,N*128)
    a(f"""s_lshr_b32 s34, s2, 3
s_mul_i32 s34, s34, {391*128}
v_lshlrev_b32 v23, 7, v0
v_cmp_gt_u32 vcc, 391, v0
v_mov_b32 v22, 0x7ffffff0
s_nop 0
v_cndmask_b32 v23, v22, v23, vcc
buffer_load_dword v23, v23, s[36:39], s34 offen""")
def leak(st, base):
    return f"""s_waitcnt vmcnt(0)
s_memrealtime s[{st+2}:{st+3}]
s_mov_b32 s26, 0x10000000
s_lshl_b32 s3, s2, 2
s_add_u32 s3, s3, {0x900000+base}
s_waitcnt lgkmcnt(0)
v_mov_b32 v2, 0
v_mov_b32 v3, s{st}
v_mov_b32 v4, s{st+2}
buffer_atomic_umin v3, v2, s[24:27], s3 offen
buffer_atomic_umax v4, v2, s[24:27], s3 offen offset:1024
"""
def k1(opt):
    a=A()
    DBG=opt.get('dbg')
    SP=opt.get('k1st','')
    DBGOUT="s_memrealtime s[56:57]\ns_waitcnt vmcnt(0)\ns_memrealtime s[58:59]\ns_waitcnt lgkmcnt(0)\ns_mov_b32 s26, 0x10000000\ns_lshl_b32 s3, s2, 4\ns_add_u32 s3, s3, s14\ns_lshl_b32 s3, s3, 7\ns_add_u32 s3, s3, 0xc00000\nv_mov_b32 v2, 0\n"
    for q in range(4):
        for jj in range(4): DBGOUT+=f"v_mov_b32 v{4+jj}, s{44+4*q+jj}\n"
        DBGOUT+=f"buffer_store_dwordx4 v[4:7], v2, s[24:27], s3 offen offset:{16*q}\ns_nop 1\n"
    CPF="""s_getpc_b64 s[60:61]
K1_PC:
v_cmp_gt_u32 vcc, (MPNN_CODE_END-K1_PC)/128, v0
v_lshlrev_b32 v38, 7, v0
s_and_saveexec_b64 s[62:63], vcc
s_cbranch_execz K1_NOCPF
global_load_dword v39, v38, s[60:61]
K1_NOCPF:
s_mov_b64 exec, s[62:63]"""
    LEAK1=leak(40,0).replace("buffer_atomic_umin","buffer_store_dword").replace("buffer_atomic_umax","buffer_store_dword")
    a(f"""
s_cmp_ge_u32 s2, {K1_GRID}
s_cbranch_scc1 K1_END
{"s_memrealtime s[40:41]" if opt.get('leak') else ""}
{"s_memrealtime s[44:45]" if DBG else ""}
s_load_dwordx4 s[4:7], s[0:1], 16
s_load_dwordx4 s[8:11], s[0:1], 32
s_load_dwordx2 s[12:13], s[0:1], 64
s_load_dwordx2 s[32:33], s[0:1], 0
{CPF if opt.get('cpf') else ""}
v_lshrrev_b32 v2, 6, v0
v_and_b32 v3, 63, v0
v_readfirstlane_b32 s14, v2
s_cmp_ge_u32 s2, {NCH}
s_cbranch_scc1 K1_WPREP
v_lshlrev_b32 v1, 4, v0
v_lshlrev_b32 v2, 2, v0
v_mov_b32 v20, 0
v_mov_b32 v21, 1
v_cmp_gt_u32 vcc, 256, v0
s_and_saveexec_b64 s[30:31], vcc
ds_write_b32 v2, v20
s_mov_b64 exec, s[30:31]
s_mul_i32 s3, s2, {CH*4}
v_cmp_gt_u32 vcc, {CH//4}, v0
s_waitcnt lgkmcnt(0)
""")
    srd(a,16,4,E*4); srd(a,20,6,E*4); srd(a,24,12,WS_SIZE)
    a(f"""
{"s_memrealtime s[46:47]" if DBG else ""}
s_and_b64 exec, exec, vcc
buffer_load_dwordx4 v[4:7], v1, s[20:23], s3 offen nt
buffer_load_dwordx4 v[8:11], v1, s[16:19], s3 offen nt
""")
    if opt.get('xpf')=='1': xpf(a,opt)
    a(f"""
s_barrier
s_waitcnt vmcnt({2 if opt.get('xpf')=='1' else 1})
{"s_memrealtime s[48:49]" if DBG else ""}
""")
    for i in range(4):
        a(f"""v_lshlrev_b32 v{12+i}, 2, v{4+i}
v_and_b32 v{12+i}, 0x3fc, v{12+i}
ds_add_rtn_u32 v{16+i}, v{12+i}, v21""")
    for i in range(4):
        a(f"""v_lshrrev_b32 v{4+i}, 8, v{4+i}
v_add_u32 v22, {i}, v2
v_lshl_or_b32 v{4+i}, v{4+i}, 12, v22""")
    a(f"s_waitcnt vmcnt({1 if opt.get('xpf')=='1' else 0})")
    if opt.get('xpf')=='2': xpf(a,opt)
    for i in range(4):
        a(f"v_lshl_or_b32 v{4+i}, v{8+i}, 18, v{4+i}")
    a(f"""
s_waitcnt lgkmcnt(0)
s_barrier
{"s_memrealtime s[50:51]" if DBG else ""}
s_cmp_lg_u32 s14, 0
s_cbranch_scc1 K1_SKIPSCAN
ds_read_b128 v[24:27], v1
s_waitcnt lgkmcnt(0)
v_add_u32 v28, v24, v25
v_add_u32 v29, v28, v26
v_add_u32 v30, v29, v27
v_mov_b32 v31, v30
""")
    scan_add(a,31)
    a(f"""
v_sub_u32 v32, v31, v30
v_add_u32 v33, v32, v24
v_add_u32 v34, v32, v28
v_add_u32 v35, v32, v29
ds_write_b128 v1, v[32:35]
v_lshl_or_b32 v36, v24, 16, v32
v_lshl_or_b32 v37, v25, 16, v33
v_lshl_or_b32 v38, v26, 16, v34
v_lshl_or_b32 v39, v27, 16, v35
s_lshl_b32 s15, s2, 10
s_add_u32 s15, s15, {WS_TAB}
buffer_store_dwordx4 v[36:39], v1, s[24:27], s15 offen {SP}
s_waitcnt lgkmcnt(0)
K1_SKIPSCAN:
s_barrier
{"s_memrealtime s[52:53]" if DBG else ""}
""")
    for i in range(4): a(f"ds_read_b32 v{24+i}, v{12+i}")
    for i in range(4):
        a(f"""s_waitcnt lgkmcnt({0 if DBG else 3-i})
v_add_lshl_u32 v{24+i}, v{24+i}, v{16+i}, 2""")
    for i in range(4):
        a(f"ds_write_b32 v{24+i}, v{4+i} offset:{K1_STAGE}")
    a(f"""
s_waitcnt lgkmcnt(0)
s_barrier
{"s_memrealtime s[54:55]" if DBG else ""}
ds_read_b128 v[24:27], v1 offset:{K1_STAGE}
s_add_u32 s3, s3, {WS_REC}
s_waitcnt lgkmcnt(0)
buffer_store_dwordx4 v[24:27], v1, s[24:27], s3 offen {SP}
{DBGOUT if DBG else ""}
{LEAK1 if opt.get('leak') else ""}
s_endpgm
K1_WPREP:
s_waitcnt lgkmcnt(0)
""")
    xpf(a,opt)
    a(f"""
s_sub_u32 s15, s2, {NCH}
s_mul_i32 s15, s15, 13
s_add_u32 s15, s15, s14
s_cmp_ge_u32 s15, 34
s_cbranch_scc1 K1_END
s_waitcnt lgkmcnt(0)
""")
    srd(a,24,12,WS_SIZE)
    a(f"""
s_mov_b32 s16, s8
s_and_b32 s17, s9, 0xffff
s_mov_b32 s18, {144*128}
s_mov_b32 s19, 0x20000
s_cmp_ge_u32 s15, 10
s_cbranch_scc1 K1_W16
s_lshr_b32 s20, s15, 1
s_and_b32 s21, s15, 1
s_lshl_b32 s22, s20, 4
s_cmp_eq_u32 s20, 4
s_cselect_b32 s22, 128, s22
s_lshl_b32 s22, s22, 7
s_lshl_b32 s21, s21, 6
s_add_u32 s22, s22, s21
v_and_b32 v4, 31, v3
v_lshrrev_b32 v5, 5, v3
s_branch K1_WLOAD
K1_W16:
s_sub_u32 s20, s15, 10
s_mov_b32 s23, 64
s_cmp_ge_u32 s15, 18
s_cbranch_scc0 K1_W16B
s_sub_u32 s20, s15, 18
s_mov_b32 s23, 0
s_mov_b32 s16, s10
s_and_b32 s17, s11, 0xffff
s_mov_b32 s18, {128*128}
K1_W16B:
s_lshr_b32 s21, s20, 2
s_lshl_b32 s21, s21, 5
s_add_u32 s22, s21, s23
s_lshl_b32 s22, s22, 7
s_and_b32 s21, s20, 3
s_lshl_b32 s21, s21, 5
s_add_u32 s22, s22, s21
v_and_b32 v4, 15, v3
v_lshrrev_b32 v5, 4, v3
K1_WLOAD:
v_lshlrev_b32 v4, 1, v4
v_lshl_add_u32 v4, v5, 10, v4
""")
    for j in range(8):
        a(f"buffer_load_ushort v{8+j}, v4, s[16:19], s22 offen offset:{j*128}")
    a("v_lshlrev_b32 v6, 4, v3\ns_lshl_b32 s15, s15, 10\ns_waitcnt vmcnt(0)")
    for j in range(4):
        a(f"v_lshl_or_b32 v{16+j}, v{9+2*j}, 16, v{8+2*j}")
    a("""buffer_store_dwordx4 v[16:19], v6, s[24:27], s15 offen
K1_END:""")
    return a.txt(), 40

NW=12
ROWB=768; NROW=52
KMAX=14; ROWK=49*32
GRIDB=22016; DSLOT=KMAX*ROWK
L_CNT=NROW*ROWB
L_BASE=L_CNT+NW*256
L_PERM=L_BASE+NW*256
L_XO=L_PERM+4096
L_EO=L_XO+GRIDB
L_STG=L_EO+GRIDB
STGW=5120
L_XOWN=L_STG+NW*STGW
K2_LDS=L_XOWN+56*128
AGGB_STRIDE=144
XPAD=0x7fffff80
EPAD=0x7fffffe0
PERM_DUMMY=DSLOT|((49*ROWB)<<16)
assert GRIDB%256==0 and L_XO%32==0 and DSLOT+32<=GRIDB and K2_LDS<=163840
SWZ=4

def k2(opt):
    a=A()
    DBG=opt.get('dbg')
    def stamp(i, wait=False):
        if DBG:
            a(f"s_memrealtime s[{72+2*i}:{73+2*i}]")
            if i==5: a("s_memtime s[92:93]")
            if i==8: a("s_memtime s[94:95]")
            if wait: a("s_waitcnt lgkmcnt(0)")
    PA1=2; PA3=3; CX=4; CE=5; N8=6; CDX=7; CDE=8; AR=9; P1=14; EOr=15; P3=16; SX=18; SY=20; AXA=22; AEA=23
    XOr=24; QB=28; AX=36; AE=52; NP=56; T=64; PT=80; FT=84; D0=88; D1=104; WB=120
    REC=36; XOF=48; CA=60; LR=72; B4=84; TMP=96
    MK=44
    a(f"""
s_cmp_ge_u32 s2, 256
s_cbranch_scc1 K2_END""")
    stamp(0)
    if opt.get('leak'): a("s_memrealtime s[72:73]")
    a(f"""
s_load_dwordx4 s[4:7], s[0:1], 0
s_load_dwordx2 s[8:9], s[0:1], 48
s_load_dwordx2 s[10:11], s[0:1], 64
s_and_b32 s40, s2, 7
s_lshl_b32 s12, s40, 5
s_lshr_b32 s41, s2, 3
s_or_b32 s12, s12, s41
v_lshrrev_b32 v{TMP}, 6, v0
v_and_b32 v1, 63, v0
v_readfirstlane_b32 s13, v{TMP}
s_mov_b32 s15, 0
v_mul_u32_u24 v{TMP+1}, 43, v1
v_lshrrev_b32 v{TMP+1}, 7, v{TMP+1}   ; l/3
v_mul_u32_u24 v{TMP+2}, 3, v{TMP+1}
v_sub_u32 v{TMP+2}, v1, v{TMP+2}
v_lshlrev_b32 v161, 2, v{TMP+2}       ; v161 = 4*sub
s_mul_i32 s3, s13, 21
v_add_u32 v160, s3, v{TMP+1}          ; v160 = segment
v_cmp_gt_u32 vcc, 63, v1
v_mov_b32 v{TMP+3}, 255
v_lshlrev_b32 v{TMP+4}, 4, v1         ; lane*16
v_cndmask_b32 v160, v{TMP+3}, v160, vcc
v_lshlrev_b32 v{TMP+5}, 10, v160
s_lshl_b32 s14, s12, 2
s_add_u32 s14, s14, {WS_TAB}
s_waitcnt lgkmcnt(0)""")
    stamp(1)
    srd(a,24,10,WS_SIZE)
    a(f"""
buffer_load_dword v{TMP+8}, v{TMP+5}, s[24:27], s14 offen
s_lshl_b32 s32, s13, 10
s_add_u32 m0, s32, {L_STG}
s_nop 0
buffer_load_dwordx4 v{TMP+4}, s[24:27], s32 offen lds""")
    srd(a,16,4,N*128); srd(a,20,6,E*32); srd(a,28,8,N*128)
    SW0=int(opt.get('sw0',0)); SW1=int(opt.get('sw1',0)); SWB=int(opt.get('swb',0))
    if SW0 or SW1:
        a(f"s_mul_i32 s100, s2, {NW}\ns_add_u32 s100, s100, s13\ns_mul_i32 s3, s100, {SW0*128}\ns_add_u32 s3, s3, {SWB*128}")
        for k in range(SW0): a(f"s_buffer_load_dword s101, s[20:23], s3 offset:{k*128}")
        a(f"s_mul_i32 s100, s100, {SW1*128}\ns_add_u32 s100, s100, {(SWB+SW0*256*NW)*128}")
    def swarm():
        if SW1:
            for k in range(SW1): a(f"s_buffer_load_dword s101, s[20:23], s100 offset:{k*128}")
            a(f"s_add_u32 s100, s100, {SW1*128*256*NW}")
    a(f"""
s_lshr_b32 s33, s13, 2                ; mt
s_and_b32 s34, s13, 3                 ; nt
v_and_b32 v162, 15, v1
v_lshrrev_b32 v163, 4, v1
s_lshl_b32 s35, s12, 7
s_lshl_b32 s36, s33, 19
s_add_u32 s68, s35, s36
s_add_u32 s69, s35, {3<<19}
v_lshrrev_b32 v164, 1, v162
v_xor_b32 v164, v164, v163
v_lshlrev_b32 v164, 4, v164
v_lshl_add_u32 v164, v162, 7, v164
v_add_u32 v164, {L_XOWN}, v164
v_mov_b32 v{T}, 0
v_mov_b32 v{T+1}, 0
v_mov_b32 v{T+2}, 0
v_mov_b32 v{T+3}, 0
v_lshrrev_b32 v{T+4}, 5, v0
v_mul_u32_u24 v{T+4}, {ROWB}, v{T+4}
v_and_b32 v{T+5}, 31, v0
v_lshl_add_u32 v{T+4}, v{T+5}, 4, v{T+4}
ds_write_b128 v{T+4}, v[{T}:{T+3}]
ds_write_b128 v{T+4}, v[{T}:{T+3}] offset:{24*ROWB}
s_cmp_ge_u32 s13, 2
s_cbranch_scc1 K2_Z3
ds_write_b128 v{T+4}, v[{T}:{T+3}] offset:{48*ROWB}
K2_Z3:
s_cmp_ge_u32 s13, 7
s_cbranch_scc1 K2_NOXO
v_lshrrev_b32 v{T+6}, 3, v1
s_lshl_b32 s3, s13, 2
v_lshrrev_b32 v{T+7}, 4, v1
v_add_u32 v{T+7}, s3, v{T+7}          ; row>>1
v_xor_b32 v{T+7}, v{T+7}, v1
v_and_b32 v{T+7}, 7, v{T+7}
v_lshlrev_b32 v{T+7}, 4, v{T+7}
v_lshl_add_u32 v{T+7}, v{T+6}, 15, v{T+7}
s_lshl_b32 s3, s13, 10
s_add_u32 m0, s3, {L_XOWN}
s_lshl_b32 s3, s13, 18
s_add_u32 s3, s3, s35
buffer_load_dwordx4 v{T+7}, s[16:19], s3 offen lds
K2_NOXO:
s_lshl_b32 s35, s13, 8
s_add_u32 s35, s35, {L_CNT}
K2_ROUND:
s_cmp_ge_u32 s13, 4
s_cbranch_scc1 K2_NOPF
v_lshlrev_b32 v{T+4}, 4, v0
v_mov_b32 v{T+12}, {PERM_DUMMY}
v_mov_b32 v{T+13}, v{T+12}
v_mov_b32 v{T+14}, v{T+12}
v_mov_b32 v{T+15}, v{T+12}
ds_write_b128 v{T+4}, v[{T+12}:{T+15}] offset:{L_PERM}
v_and_b32 v{T+5}, 7, v1
v_lshlrev_b32 v{T+5}, 2, v{T+5}
v_add_u32 v{T+5}, {L_XO+DSLOT}, v{T+5}
v_mov_b32 v{T+6}, {XPAD}
ds_write2st64_b32 v{T+5}, v{T+6}, v{T+6} offset0:0 offset1:{GRIDB//256}
K2_NOPF:
s_mov_b32 s39, 36                     ; R
s_mov_b32 s38, 0
s_cmp_eq_u32 s15, 0
s_cbranch_scc1 K2_FIRST
v_lshlrev_b32 v{TMP+5}, 10, v160
buffer_load_dword v{TMP+8}, v{TMP+5}, s[24:27], s14 offen
s_waitcnt vmcnt(0)
K2_FIRST:
v_cmp_gt_u32 vcc, {NCH}, v160
v_mul_u32_u24 v165, {CH}, v160        ; chunk*CH
v_mov_b32 v{TMP+10}, 0x7ffffff0
s_mov_b32 s3, {WS_REC}
s_cmp_lt_u32 s13, 7
s_cbranch_scc1 K2_TW2
s_waitcnt vmcnt(1)
K2_TW2:
s_waitcnt vmcnt(2)""")
    stamp(2)
    a(f"""
v_cndmask_b32 v{TMP+8}, 0, v{TMP+8}, vcc
v_lshrrev_b32 v166, 16, v{TMP+8}      ; count
v_and_b32 v{TMP+8}, 0xffff, v{TMP+8}  ; start
v_subrev_u32 v166, s15, v166
v_add3_u32 v{TMP+8}, v{TMP+8}, v165, v161
v_add_lshl_u32 v{TMP+8}, v{TMP+8}, s15, 2
v_sub_u32 v{TMP+11}, v166, v161
v_cmp_lt_i32 vcc, 0, v{TMP+11}
v_cmp_lt_i32 s[40:41], 12, v{TMP+11}
v_cmp_lt_i32 s[36:37], 24, v{TMP+11}
v_cndmask_b32 v{TMP+12}, v{TMP+10}, v{TMP+8}, vcc
v_cndmask_b32 v{TMP+13}, v{TMP+10}, v{TMP+8}, s[40:41]
buffer_load_dwordx4 v[{REC}:{REC+3}], v{TMP+12}, s[24:27], s3 offen
v_cndmask_b32 v{TMP+14}, v{TMP+10}, v{TMP+8}, s[36:37]
buffer_load_dwordx4 v[{REC+4}:{REC+7}], v{TMP+13}, s[24:27], s3 offen offset:48
buffer_load_dwordx4 v[{REC+8}:{REC+11}], v{TMP+14}, s[24:27], s3 offen offset:96
v_lshlrev_b32 v165, 5, v165
s_cmp_lg_u32 s15, 0
s_cbranch_scc1 K2_NOQ
""")
    a(f"""
v_add_u32 v{TMP+4}, {L_STG}, v{TMP+4}
""")
    SX_=int(opt.get('sx',0))
    if SX_:
        a(f"s_lshr_b32 s3, s2, 3\ns_mul_i32 s3, s3, {NW}\ns_add_u32 s3, s3, s13\ns_mul_i32 s100, s3, {33*128}")
        for k in range(SX_): a(f"s_buffer_load_dword s101, s[16:19], s100 offset:{k*128}")
    a(f"""
s_waitcnt vmcnt(3)
s_barrier
""")
    for f in range(10): a(f"ds_read_b128 v[{WB+4*f}:{WB+4*f+3}], v{TMP+4} offset:{f*1024}")
    a(f"""
s_mul_i32 s42, s13, {STGW}
s_add_u32 s42, s42, {L_STG}
s_mov_b32 s70, 0xbfb8aa3b             ; -log2(e)
s_mov_b32 s71, 0xbfb8aa3b
s_mov_b32 s96, 0x30800000             ; 2^-30
s_mov_b32 s97, 0x30800000
v_and_b32 v{T+6}, 31, v1              ; m / n
v_lshrrev_b32 v{T+7}, 5, v1           ; h
v_lshlrev_b32 v{N8}, 3, v{T+6}
v_bfe_u32 v{T+8}, v{T+6}, 2, 1        ; h_m
v_lshrrev_b32 v{T+9}, 3, v{T+6}       ; [u c2]
v_lshl_or_b32 v{T+9}, v{T+8}, 2, v{T+9}   ; e' = [h_m u c2]
v_and_b32 v{T+10}, 3, v{T+6}          ; q
v_lshl_or_b32 v{T+11}, v{T+9}, 2, v{T+10} ; t
v_cmp_eq_u32 vcc, v{T+8}, v{T+7}
v_mov_b32 v{QB+6}, 0
v_mov_b32 v{QB+7}, 0
v_mov_b32 v{QB+4}, 0x3f803f80
v_cndmask_b32 v{QB+4}, 0, v{QB+4}, vcc
v_cmp_gt_u32 vcc, 16, v{T+6}
v_lshl_or_b32 v{T+12}, v{T+8}, 2, v{T+10} ; f(t) = q | h_m<<2
v_xor_b32 v{T+12}, v{T+12}, v{T+7}    ; f ^ h
v_cndmask_b32 v{QB+5}, v{QB+4}, 0, vcc
v_cndmask_b32 v{QB+4}, 0, v{QB+4}, vcc
v_lshlrev_b32 v{T+13}, 10, v{T+10}
v_lshl_add_u32 v{T+13}, v{T+9}, 7, v{T+13}
v_add_u32 v{T+13}, s42, v{T+13}
""")
    for s in range(4):
        a(f"""v_xor_b32 v{T+14}, {2*s}, v{T+12}
v_lshl_add_u32 v{AR+s}, v{T+14}, 4, v{T+13}""")
    a(f"""
v_bfe_u32 v{T+14}, v{T+11}, 3, 1
v_xor_b32 v{T+14}, v{T+14}, v{T+7}
v_lshlrev_b32 v{T+14}, 4, v{T+14}
v_lshl_add_u32 v{T+14}, v{T+11}, 5, v{T+14}
s_add_u32 s3, s42, 4096
v_add_u32 v{AR+4}, s3, v{T+14}
v_lshlrev_b32 v{T+14}, 2, v{T+7}
v_and_b32 v{T+15}, 7, v1
v_xor_b32 v{T+14}, v{T+14}, v{T+15}
v_lshlrev_b32 v{CDX}, 4, v{T+14}
v_lshrrev_b32 v{T+14}, 4, v1
v_xor_b32 v{T+14}, v{T+14}, v1
v_and_b32 v{T+14}, 1, v{T+14}
v_lshlrev_b32 v{CDE}, 4, v{T+14}
v_bfe_u32 v{T+14}, v1, 3, 1
v_lshlrev_b32 v{T+14}, 4, v{T+14}
v_add_u32 v{CX}, {L_XO}, v{T+14}
v_bfe_u32 v{T+14}, v1, 1, 3
v_lshlrev_b32 v{T+14}, 2, v{T+14}
v_add_u32 v{CE}, {L_EO}, v{T+14}
s_branch K2_MASKS
K2_NOQ:
s_waitcnt vmcnt(0)
K2_MASKS:
v_lshl_add_u32 v{TMP}, v1, 2, s35
v_mov_b32 v{TMP+1}, 0
ds_write_b32 v{TMP}, v{TMP+1}
v_min_i32 v{TMP+11}, s39, v166
v_sub_u32 v{TMP+11}, v{TMP+11}, v161
v_mov_b32 v{TMP+2}, 1
v_cmp_lt_i32 s[40:41], s39, v166
""")
    def blockC(lbl, body):
        a(f"s_cmp_eq_u64 s[{MK+16}:{MK+17}], 0\ns_cbranch_scc1 {lbl}")
        for i in range(8,12): body(i)
        a(f"{lbl}:")
    for i in range(12):
        a(f"v_cmp_lt_i32 s[{MK+2*i}:{MK+2*i+1}], {(i&3)+12*(i>>2)}, v{TMP+11}")
    a(f"""
s_cmp_lg_u32 s38, 0
s_cbranch_scc1 K2_CNT2
s_waitcnt vmcnt(0)""")
    stamp(3)
    def cnt1(i):
        a(f"""s_mov_b64 exec, s[{MK+2*i}:{MK+2*i+1}]
v_bfe_u32 v{CA+i}, v{REC+i}, 12, 6
v_lshl_add_u32 v{CA+i}, v{CA+i}, 2, s35
ds_add_rtn_u32 v{LR+i}, v{CA+i}, v{TMP+2}""")
    for i in range(8): cnt1(i)
    blockC("K2_C0", cnt1)
    a("s_branch K2_CNTD\nK2_CNT2:")
    def cnt(i):
        a(f"""s_mov_b64 exec, s[{MK+2*i}:{MK+2*i+1}]
ds_add_rtn_u32 v{LR+i}, v{CA+i}, v{TMP+2}""")
    for i in range(4): cnt(i)
    a(f"""
K2_CNTD:
s_mov_b64 exec, s[40:41]
v_mov_b32 v{TMP+3}, s35
ds_add_u32 v{TMP+3}, v{TMP+2} offset:252
s_mov_b64 exec, -1
s_cmp_lg_u32 s38, 0
s_cbranch_scc1 K2_NOUNP
s_mov_b32 s3, 0xffffff80
""")
    def unp2(i):
        a(f"""v_lshrrev_b32 v{XOF+i}, 11, v{REC+i}
v_and_b32 v{XOF+i}, s3, v{XOF+i}
v_and_b32 v{REC+i}, 0xfff, v{REC+i}
v_lshl_add_u32 v{REC+i}, v{REC+i}, 5, v165""")
    for i in range(8): unp2(i)
    blockC("K2_C2", unp2)
    if opt.get('epf'):
        nw_,nr_=[int(c) for c in opt['epf']]
        a(f"s_cmp_ge_u32 s13, {nw_}\ns_cbranch_scc1 K2_NOUNP\nv_mov_b32 v{TMP+3}, 0x7ffffff0")
        for i in range(nr_):
            a(f"""v_cndmask_b32 v{TMP+5}, v{TMP+3}, v{REC+i}, s[{MK+2*i}:{MK+2*i+1}]
buffer_load_dword v{TMP+23}, v{TMP+5}, s[20:23], 0 offen""")
    a(f"""
K2_NOUNP:
v_lshlrev_b32 v{TMP}, 2, v1
s_waitcnt lgkmcnt(0)
s_barrier""")
    stamp(4)
    PF=TMP+4
    for r in range(0,NW,2): a(f"ds_read2st64_b32 v[{PF+2+r}:{PF+3+r}], v{TMP} offset0:{L_CNT//256+r} offset1:{L_CNT//256+r+1}")
    a(f"""
v_mov_b32 v{PF+1}, 0
v_cmp_gt_u32 vcc, 63, v1
s_mov_b32 s3, 0x03000020
v_mul_lo_u32 v{TMP+1}, v1, s3         ; PJ
s_waitcnt lgkmcnt(0)
""")
    for r in range(1,NW): a(f"v_add_u32 v{PF+2+r}, v{PF+1+r}, v{PF+2+r}")
    TOT=PF+13; OC=TMP+18; BS=TMP+19; RED=TMP+20; NPD=167
    a(f"""
s_set_gpr_idx_on s13, gpr_idx(SRC0)
s_nop 1
v_mov_b32 v{BS}, v{PF+1}
s_set_gpr_idx_off
s_nop 1
v_readlane_b32 s36, v{TOT}, 63
v_cndmask_b32 v{TOT}, 0, v{TOT}, vcc
v_add_u32 v{OC}, 7, v{TOT}
v_lshrrev_b32 v{OC}, 3, v{OC}
v_lshlrev_b32 v{NPD}, 3, v{OC}
v_sub_u32 v{NPD}, v{NPD}, v{TOT}
s_cmp_lg_u32 s38, 0
s_cbranch_scc1 K2_DENSE
v_cmp_lt_u32 vcc, {KMAX}, v{OC}
v_lshlrev_b32 v{BS}, 2, v{BS}
v_add_u32 v{TMP+2}, s35, v{TMP}
s_cbranch_vccz K2_FAST
s_mov_b32 s38, 1
s_mov_b32 s39, 12
s_barrier
s_branch K2_MASKS
K2_DENSE:
v_mov_b32 v{RED}, v{OC}
""")
    scan_add(a,RED)
    a(f"""
s_nop 0
v_readlane_b32 s37, v{RED}, 63
v_sub_u32 v{RED}, v{RED}, v{OC}
v_lshl_add_u32 v{BS}, v{RED}, 3, v{BS}
v_lshl_add_u32 v{TOT}, v{RED}, 3, v{TOT}
v_lshlrev_b32 v{BS}, 2, v{BS}
v_add_u32 v{TMP+2}, s35, v{TMP}
ds_write_b32 v{TMP+2}, v{BS} offset:{L_BASE-L_CNT}
v_and_b32 v{TMP+1}, 0xffff0000, v{TMP+1}
s_mov_b32 s43, s13
K2_DL:
v_cmp_lt_u32 vcc, s43, v{OC}
s_cbranch_vccz K2_DLE
v_add_u32 v{TMP+3}, s43, v{RED}
v_lshl_or_b32 v{TMP+21}, v{TMP+3}, 5, v{TMP+1}
v_lshlrev_b32 v{TMP+3}, 2, v{TMP+3}
s_mov_b64 exec, vcc
ds_write_b32 v{TMP+3}, v{TMP+21} offset:{L_PERM}
s_mov_b64 exec, -1
s_add_u32 s43, s43, {NW}
s_branch K2_DL
K2_DLE:
s_mov_b32 s98, 32                     ; sK
s_mov_b32 s99, 0
v_mov_b32 v{TMP+22}, {L_XO}
s_branch K2_SCAT
K2_FAST:
ds_write_b32 v{TMP+2}, v{BS} offset:{L_BASE-L_CNT}
s_mov_b32 s98, {ROWK}
s_mov_b32 s99, 8
s_lshl_b32 s3, s35, 3
s_sub_u32 s3, {L_XO}, s3
v_mov_b32 v{TMP+22}, s3
K2_SCAT:
""")
    def look(i):
        a(f"""s_mov_b64 exec, s[{MK+2*i}:{MK+2*i+1}]
ds_read_b32 v{B4+i}, v{CA+i} offset:{L_BASE-L_CNT}""")
    for i in range(8): look(i)
    blockC("K2_C3", look)
    a(f"""
s_mov_b64 exec, -1
v_cmp_lt_u32 vcc, s13, v{NPD}
v_add_lshl_u32 v{PF+2}, v{TOT}, s13, 2
v_mad_u32_u24 v{PF+3}, v{TMP+2}, s99, v{TMP+22}
v_and_or_b32 v{PF+3}, v{PF+2}, 28, v{PF+3}
v_lshrrev_b32 v{PF+2}, 5, v{PF+2}
v_mad_u32_u24 v{PF+2}, v{PF+2}, s98, v{PF+3}
v_mov_b32 v{PF+3}, {XPAD}
s_mov_b64 exec, vcc
ds_write2st64_b32 v{PF+2}, v{PF+3}, v{PF+3} offset0:0 offset1:{GRIDB//256}
s_mov_b64 exec, -1
s_cmp_lg_u32 s38, 0
s_cbranch_scc1 K2_PERMDONE
s_mov_b32 s43, s13
K2_PL:
v_min_u32 v{RED}, s43, v{OC}
v_lshl_or_b32 v{RED}, v{OC}, 16, v{RED}
v_cmp_lt_u32 vcc, s43, v{OC}
""")
    scan_add(a,RED)
    a(f"""
s_mul_i32 s3, s43, {ROWK}
v_readlane_b32 s37, v{RED}, 63
v_mbcnt_lo_u32_b32 v{TMP+3}, vcc_lo, 0
v_mbcnt_hi_u32_b32 v{TMP+3}, vcc_hi, v{TMP+3}
v_add_u32 v{TMP+21}, s3, v{TMP+1}
s_and_b32 s3, s37, 0xffff
s_lshr_b32 s37, s37, 16
v_add_lshl_u32 v{TMP+3}, v{TMP+3}, s3, 2
s_mov_b64 exec, vcc
ds_write_b32 v{TMP+3}, v{TMP+21} offset:{L_PERM}
s_mov_b64 exec, -1
s_add_u32 s43, s43, {NW}
v_cmp_lt_u32 vcc, s43, v{OC}
s_cbranch_vccnz K2_PL
K2_PERMDONE:
s_waitcnt lgkmcnt(0)
""")
    def scat(i):
        a(f"""s_mov_b64 exec, s[{MK+2*i}:{MK+2*i+1}]
v_lshl_add_u32 v{B4+i}, v{LR+i}, 2, v{B4+i}
v_mad_u32_u24 v{LR+i}, v{CA+i}, s99, v{TMP+22}
v_and_or_b32 v{LR+i}, v{B4+i}, 28, v{LR+i}
v_lshrrev_b32 v{B4+i}, 5, v{B4+i}
v_mad_u32_u24 v{B4+i}, v{B4+i}, s98, v{LR+i}
ds_write2st64_b32 v{B4+i}, v{XOF+i}, v{REC+i} offset0:0 offset1:{GRIDB//256}""")
    for i in range(8): scat(i)
    blockC("K2_C4", scat)
    if opt.get('epf2'):
        w0,w1,nr_=[int(c) for c in opt['epf2']]
        a(f"s_mov_b64 exec, -1\ns_cmp_lt_u32 s13, {w0}\ns_cbranch_scc1 K2_NOEPF2\ns_cmp_ge_u32 s13, {w1}\ns_cbranch_scc1 K2_NOEPF2\nv_mov_b32 v{TMP+3}, 0x7ffffff0")
        for i in range(nr_):
            a(f"""v_cndmask_b32 v{TMP+5}, v{TMP+3}, v{REC+i}, s[{MK+2*i}:{MK+2*i+1}]
buffer_load_dword v{TMP+23}, v{TMP+5}, s[20:23], 0 offen""")
        a("K2_NOEPF2:")
    a(f"""
s_mov_b64 exec, -1
s_cmp_lg_u32 s15, 0
s_cbranch_scc1 K2_WDONE
v_lshlrev_b32 v{TMP}, 4, v1
s_lshl_b32 s3, s34, 10
s_add_u32 s40, s3, {WS_W2}
s_add_u32 s41, s3, {WS_W2+4096}
buffer_load_dwordx4 v[{D1}:{D1+3}], v{TMP}, s[24:27], s40 offen
buffer_load_dwordx4 v[{D1+4}:{D1+7}], v{TMP}, s[24:27], s41 offen
K2_WDONE:
s_add_u32 s37, s37, 3
s_lshr_b32 s37, s37, 2                ; ngroups
s_lshl_b32 s3, s13, 4
s_add_u32 s3, s3, {L_PERM}
v_lshrrev_b32 v{TMP+1}, 4, v1
v_lshl_add_u32 v{PA1}, v{TMP+1}, 2, s3
v_lshrrev_b32 v{TMP+1}, 5, v1
v_lshl_add_u32 v{PA3}, v{TMP+1}, 3, s3
s_add_u32 s43, s42, 1024
s_add_u32 s44, s42, 2048
s_add_u32 s45, s42, 3072
s_add_u32 s46, s42, 4096
s_mov_b32 s52, s13
s_waitcnt lgkmcnt(0)
s_barrier""")
    stamp(5)
    GS=NW*16
    SD="dst_sel:DWORD dst_unused:UNUSED_PAD"
    def idx_addr():
        return [f"v_add_u32_sdwa v{AXA}, v{P1}, v{CX} {SD} src0_sel:WORD_0 src1_sel:DWORD",
                f"v_add_u32_sdwa v{AEA}, v{P1}, v{CE} {SD} src0_sel:WORD_0 src1_sel:DWORD"]
    def idx_read():
        return [f"ds_read_b128 v[{XOr}:{XOr+3}], v{AXA}", f"ds_read_b32 v{EOr}, v{AEA}"]
    def sy_calc():
        return [f"v_add_u32_sdwa v{SY}, v{P3}, v{N8} {SD} src0_sel:WORD_1 src1_sel:DWORD",
                f"v_add_u32_sdwa v{SY+1}, v{P3+1}, v{N8} {SD} src0_sel:WORD_1 src1_sel:DWORD"]
    def q_ax_read():
        l=[f"ds_read_b128 v[{AE}:{AE+3}], v{AR+4}",
           f"ds_read_b32 v{QB}, v{SY} offset:512", f"ds_read_b32 v{QB+1}, v{SY+1} offset:512",
           f"ds_read_b32 v{QB+2}, v{SY} offset:516", f"ds_read_b32 v{QB+3}, v{SY+1} offset:516"]
        l+=[f"ds_read_b128 v[{AX+4*s}:{AX+4*s+3}], v{AR+s}" for s in range(4)]
        return l
    def issue_loads(lbl):
        a(f"s_cmp_ge_u32 s52, s37\ns_cbranch_scc1 {lbl}")
        a(f"""s_mov_b32 m0, s46
v_add_u32 v{EOr}, v{EOr}, v{CDE}
{"" if opt.get('noe') else f"buffer_load_dwordx4 v{EOr}, s[20:23], 0 offen lds {opt.get('epol','')}"}""")
        for q in range(4):
            a(f"""s_mov_b32 m0, s{42+q}
v_xad_u32 v{XOr+q}, v{CDX}, {16*q}, v{XOr+q}
{"" if opt.get('nox') else f"buffer_load_dwordx4 v{XOr+q}, s[16:19], 0 offen lds"}""")
        a(f"{lbl}:\ns_add_u32 s52, s52, {NW}")
    W=lambda s,t: f"v[{WB+4*(2*s+t)}:{WB+4*(2*s+t)+3}]"
    Dr=lambda t: (D0 if t==0 else D1)
    Dt=lambda t: f"v[{Dr(t)}:{Dr(t)+15}]"
    MF="v_mfma_f32_32x32x16_bf16"
    def mfmas(t):
        l=[f"{MF} {Dt(t)}, v[{AE}:{AE+3}], {W(4,t)}, 0",
           f"{MF} {Dt(t)}, v[{QB+4}:{QB+7}], v[{QB+2*t}:{QB+2*t+3}], {Dt(t)}"]
        l+=[f"{MF} {Dt(t)}, v[{AX+4*s}:{AX+4*s+3}], {W(s,t)}, {Dt(t)}" for s in range(4)]
        return l
    def P(r): return f"v[{r}:{r+1}]"
    def scale(t): return [f"v_pk_mul_f32 {P(T+2*i)}, {P(Dr(t)+2*i)}, s[70:71]" for i in range(8)]
    def exps(): return [f"v_exp_f32 v{T+i}, v{T+i}" for i in range(16)]
    def rcps(): return [f"v_rcp_f32 v{NP+4*o+2+i}, v{NP+4*o+2+i}" for o in range(2) for i in range(2)]
    def flush(tile):
        l=[f"v_mul_f32 v{NP+4*o}, v{NP+4*o}, v{NP+4*o+2}" for o in range(2)]
        l+=[f"v_fmac_f32 v{NP+4*o}, v{NP+4*o+1}, v{NP+4*o+3}" for o in range(2)]
        l+=[f"v_cvt_f64_f32 {P(FT+2*o)}, v{NP+4*o}" for o in range(2)]
        l+=[f"ds_add_f64 v{SX+o}, {P(FT+2*o)} offset:{256*tile}" for o in range(2)]
        return l
    def pkphase(t):
        seq=[]
        for o in range(2):
            z=Dr(t)+8*o; tt=T+8*o; p=P(PT+2*o); Nn=P(NP+4*o); Pq=P(NP+4*o+2)
            A_,B_,C_,D_=[P(z+2*i) for i in range(4)]
            tA,tB,tC,tD=[P(tt+2*i) for i in range(4)]
            s=[[f"v_pk_fma_f32 {P(tt+2*i)}, {P(tt+2*i)}, s[96:97], s[96:97] clamp" for i in range(4)],
               [f"v_pk_mul_f32 {p}, {tA}, {tB}", f"v_pk_mul_f32 {A_}, {A_}, {tB}", f"v_pk_mul_f32 {C_}, {C_}, {tD}"],
               [f"v_pk_fma_f32 {A_}, {B_}, {tA}, {A_}", f"v_pk_fma_f32 {C_}, {D_}, {tC}, {C_}", f"v_pk_mul_f32 {B_}, {tC}, {tD}"],
               [f"v_pk_mul_f32 {A_}, {A_}, {B_}", f"v_pk_mul_f32 {Pq}, {p}, {B_}"],
               [f"v_pk_fma_f32 {Nn}, {C_}, {p}, {A_}"]]
            seq.append(s)
        l=[]
        for st in range(5):
            for o in range(2): l+=seq[o][st]
        return l
    def weave(mf, tr, rest):
        out=[]; tr=list(tr)
        for m in mf:
            out.append(m); out+=tr[:3]; tr=tr[3:]
        return out+tr+rest
    emit=lambda l: [a(x) for x in l]
    NOV=opt.get('novalu')
    a(f"""
s_cmp_ge_u32 s52, s37
s_cbranch_scc1 K2_CORR
ds_read_b32 v{P1}, v{PA1}
ds_read_b64 v[{P3}:{P3+1}], v{PA3}
s_waitcnt lgkmcnt(0)""")
    emit(idx_addr()); emit(idx_read()); emit(sy_calc())
    a(f"ds_read_b32 v{P1}, v{PA1} offset:{GS}\nds_read_b64 v[{P3}:{P3+1}], v{PA3} offset:{GS}\ns_waitcnt lgkmcnt(0)")
    issue_loads("K2_IL0")
    emit(idx_addr()); emit(idx_read())
    a(f"ds_read_b32 v{P1}, v{PA1} offset:{2*GS}")
    a(f"v_add_u32 v{PA1}, {3*GS}, v{PA1}\nv_add_u32 v{PA3}, {2*GS}, v{PA3}")
    a(f"""
K2_CORR:
s_cmp_lg_u32 s15, 0
s_cbranch_scc1 K2_NOQ2
s_lshl_b32 s3, s33, 11
v_add_u32 v{T}, s3, v164
v_xor_b32 v{T+1}, 64, v{T}
v_xor_b32 v{T+2}, 64, v164
ds_read_b128 v[{AX}:{AX+3}], v{T}
ds_read_b128 v[{AX+8}:{AX+11}], v164 offset:{48*128}
ds_read_b128 v[{AX+4}:{AX+7}], v{T+1}
ds_read_b128 v[{AX+12}:{AX+15}], v{T+2} offset:{48*128}
v_mul_u32_u24 v{T+3}, {4*ROWB}, v163
v_lshl_add_u32 v{T+3}, v162, 3, v{T+3}
s_and_b32 s40, s34, 1
s_lshl_b32 s40, s40, 7
s_lshr_b32 s41, s34, 1
s_lshl_b32 s41, s41, 2
s_add_u32 s40, s40, s41
v_add_u32 v{T+4}, s40, v{T+3}
s_mul_i32 s41, s33, {16*ROWB}
v_add_u32 v{T+3}, s41, v{T+4}
v_cmp_gt_u32 vcc, 16, v1
s_cmp_ge_u32 s13, s37
s_cbranch_scc1 K2_QW0
s_waitcnt vmcnt(5)
s_branch K2_QW1
K2_QW0:
s_waitcnt vmcnt(0)
K2_QW1:
s_waitcnt lgkmcnt(0)
v_mfma_f32_16x16x32_bf16 v[{D0}:{D0+3}], v[{AX}:{AX+3}], v[{D1}:{D1+3}], 0
v_mfma_f32_16x16x32_bf16 v[{D0+4}:{D0+7}], v[{AX+8}:{AX+11}], v[{D1}:{D1+3}], 0
v_mfma_f32_16x16x32_bf16 v[{D0}:{D0+3}], v[{AX+4}:{AX+7}], v[{D1+4}:{D1+7}], v[{D0}:{D0+3}]
v_mfma_f32_16x16x32_bf16 v[{D0+4}:{D0+7}], v[{AX+12}:{AX+15}], v[{D1+4}:{D1+7}], v[{D0+4}:{D0+7}]
s_nop 7
""")
    for i in range(8):
        q=D0+i; h=D0+8+i; l=T+5
        a(f"""v_cvt_pk_bf16_f32 v{h}, v{q}, v{q}
v_lshlrev_b32 v{l}, 16, v{h}
v_sub_f32 v{l}, v{q}, v{l}
v_cvt_pk_bf16_f32 v{h}, v{q}, v{l}""")
    for i in range(4): a(f"ds_write_b32 v{T+3}, v{D0+8+i} offset:{512+i*ROWB}")
    a("s_and_saveexec_b64 s[40:41], vcc")
    for i in range(4): a(f"ds_write_b32 v{T+4}, v{D0+12+i} offset:{512+(48+i)*ROWB}")
    a(f"""
s_mov_b64 exec, s[40:41]
s_waitcnt lgkmcnt(0)
s_barrier
K2_NOQ2:
v_and_b32 v{T}, 31, v1
v_lshlrev_b32 v{T}, 3, v{T}
v_lshrrev_b32 v{T+1}, 5, v1
v_lshl_add_u32 v{T}, v{T+1}, 2, v{T}
s_mul_i32 s3, s13, {ROWB}
v_add_u32 v{T}, s3, v{T}              ; q address
v_lshl_add_u32 v{T+1}, v1, 3, s3
v_cvt_f32_u32 v{T+2}, v{NPD}
v_mul_f32 v{T+2}, 0xce800000, v{T+2}  ; -npad * 2^30
s_mov_b32 s47, 0xffff0000
""")
    for i in range(5): a(f"ds_read_b32 v{D0+i}, v{T} offset:{512+12*i*ROWB}")
    for i in range(5): a(f"s_add_u32 s3, s13, {12*i}\ns_nop 0\nv_readlane_b32 s{53+i}, v{T+2}, s3")
    a("s_waitcnt lgkmcnt(0)")
    for i in range(5): a(f"v_lshlrev_b32 v{D0+5+i}, 16, v{D0+i}\nv_and_b32 v{D0+i}, s47, v{D0+i}\nv_add_f32 v{D0+i}, v{D0+i}, v{D0+5+i}")
    for i in range(5): a(f"v_mul_f32 v{D0+5+i}, s70, v{D0+i}")
    for i in range(5): a(f"v_exp_f32 v{D0+5+i}, v{D0+5+i}")
    for i in range(5): a(f"v_add_f32 v{D0+5+i}, 1.0, v{D0+5+i}")
    for i in range(5): a(f"v_rcp_f32 v{D0+5+i}, v{D0+5+i}")
    for i in range(5): a(f"v_mul_f32 v{D0+i}, s{53+i}, v{D0+i}")
    for i in range(5): a(f"v_mul_f32 v{D0+i}, v{D0+i}, v{D0+5+i}")
    for i in range(5): a(f"v_cvt_f64_f32 {P(D1+2*i)}, v{D0+i}")
    for i in range(4): a(f"ds_add_f64 v{T+1}, {P(D1+2*i)} offset:{12*i*ROWB}")
    a(f"""
s_cmp_lg_u32 s13, 0
s_cbranch_scc1 K2_CORR2
ds_add_f64 v{T+1}, {P(D1+8)} offset:{48*ROWB}
K2_CORR2:
s_cmp_ge_u32 s13, s37
s_cbranch_scc1 K2_LOOPEND
v_mov_b32 v{NP}, 0
v_mov_b32 v{NP+1}, 0
v_mov_b32 v{NP+2}, 1.0
v_mov_b32 v{NP+3}, 1.0
v_mov_b32 v{NP+4}, 0
v_mov_b32 v{NP+5}, 0
v_mov_b32 v{NP+6}, 1.0
v_mov_b32 v{NP+7}, 1.0
v_mov_b32 v{SX}, v{SY}
v_mov_b32 v{SX+1}, v{SY+1}
s_mov_b32 s48, s13
s_waitcnt vmcnt(0)""")
    stamp(6)
    emit(q_ax_read())
    a("s_waitcnt lgkmcnt(0)")
    issue_loads("K2_IL1")
    swarm()
    emit(mfmas(0))
    a("s_nop 11")
    emit(scale(0))
    a("K2_LOOP:")
    if opt.get('prio'):
        t1,t2,t3=[int(c) for c in opt['prio']]
        a(f"""s_sub_u32 s3, s37, s48
s_cmp_gt_u32 s3, {t3*NW}
s_cbranch_scc1 K2_P3
s_cmp_gt_u32 s3, {t2*NW}
s_cbranch_scc1 K2_P2
s_cmp_gt_u32 s3, {t1*NW}
s_cbranch_scc1 K2_P1
s_setprio 0
s_branch K2_PD
K2_P1:
s_setprio 1
s_branch K2_PD
K2_P2:
s_setprio 2
s_branch K2_PD
K2_P3:
s_setprio 3
K2_PD:""")
    restA=flush(1)+[f"v_mov_b32 v{SX}, v{SY}", f"v_mov_b32 v{SX+1}, v{SY+1}"]+sy_calc()+idx_addr()+idx_read()+[
        f"ds_read_b32 v{P1}, v{PA1}", f"ds_read_b64 v[{P3}:{P3+1}], v{PA3}",
        f"v_add_u32 v{PA1}, {GS}, v{PA1}", f"v_add_u32 v{PA3}, {GS}, v{PA3}"]
    emit(weave(mfmas(1), [] if NOV else rcps()+exps(), restA))
    a("s_waitcnt vmcnt(0)")
    emit(q_ax_read())
    if not NOV: emit(pkphase(0)); emit(scale(1))
    else: a("s_nop 7")
    a("s_waitcnt lgkmcnt(0)")
    issue_loads("K2_IL2")
    swarm()
    emit(weave(mfmas(0), [] if NOV else rcps()+exps(), flush(0)))
    if not NOV: emit(pkphase(1)); emit(scale(0))
    else: a("s_nop 7")
    a(f"""
s_add_u32 s48, s48, {NW}
s_cmp_lt_u32 s48, s37
s_cbranch_scc1 K2_LOOP""")
    emit(rcps()); a("s_nop 0"); emit(flush(1))
    a(f"""
K2_LOOPEND:
s_waitcnt vmcnt(0)
s_cmp_eq_u32 s36, 0
s_cbranch_scc1 K2_EPI
s_add_u32 s15, s15, s39
s_waitcnt lgkmcnt(0)
s_barrier
s_branch K2_ROUND
K2_EPI:""")
    stamp(7)
    XA=36; WU=52; GB=68
    a(f"""
s_lshl_b32 s3, s33, 11
v_add_u32 v8, s3, v164
v_xor_b32 v9, 64, v8
v_xor_b32 v10, 64, v164
ds_read_b128 v[{XA}:{XA+3}], v8
ds_read_b128 v[{XA+4}:{XA+7}], v9
ds_read_b128 v[{XA+8}:{XA+11}], v164 offset:{48*128}
ds_read_b128 v[{XA+12}:{XA+15}], v10 offset:{48*128}
v_lshlrev_b32 v2, 4, v1
s_lshl_b32 s36, s34, 10
""")
    for s in range(4):
        a(f"s_add_u32 s37, s36, {WS_WU+4096*s}\nbuffer_load_dwordx4 v[{WU+4*s}:{WU+4*s+3}], v2, s[24:27], s37 offen")
    a(f"""
s_mul_i32 s3, s13, {ROWB}
v_lshl_add_u32 v3, v1, 3, s3
s_mul_i32 s3, s13, {AGGB_STRIDE}
s_add_u32 s3, s3, {L_STG}
v_lshl_add_u32 v4, v1, 1, s3
v_mul_u32_u24 v5, {AGGB_STRIDE}, v162
v_lshl_add_u32 v5, v163, 4, v5
v_add_u32 v5, {L_STG}, v5
s_mul_i32 s3, s33, {16*AGGB_STRIDE}
v_add_u32 v6, s3, v5
v_lshlrev_b32 v7, 15, v162
v_lshl_add_u32 v7, v163, 3, v7
s_lshl_b32 s36, s34, 5
s_add_u32 s68, s68, s36
s_add_u32 s69, s69, s36
s_mov_b32 s3, 0xffff0000
s_waitcnt lgkmcnt(0)
s_barrier""")
    stamp(8)
    for i in range(5): a(f"ds_read_b64 {P(D0+2*i)}, v3 offset:{12*i*ROWB}")
    for i in range(5): a(f"s_waitcnt lgkmcnt({4-i if not DBG else 0})\nv_cvt_f32_f64 v{D1+i}, {P(D0+2*i)}")
    for i in range(5): a(f"v_mul_f32 v{D1+i}, s96, v{D1+i}")
    for i in range(5): a(f"v_cvt_pk_bf16_f32 v{D1+i}, v{D1+i}, v{D1+i}")
    for i in range(5): a(f"ds_write_b16 v4, v{D1+i} offset:{12*i*AGGB_STRIDE}")
    M16="v_mfma_f32_16x16x32_bf16"
    a(f"""
s_waitcnt vmcnt(0)
{M16} v[{D0}:{D0+3}], v[{WU}:{WU+3}], v[{XA}:{XA+3}], 0
{M16} v[{D0+4}:{D0+7}], v[{WU}:{WU+3}], v[{XA+8}:{XA+11}], 0
{M16} v[{D0}:{D0+3}], v[{WU+4}:{WU+7}], v[{XA+4}:{XA+7}], v[{D0}:{D0+3}]
{M16} v[{D0+4}:{D0+7}], v[{WU+4}:{WU+7}], v[{XA+12}:{XA+15}], v[{D0+4}:{D0+7}]
s_waitcnt lgkmcnt(0)
s_barrier
ds_read_b128 v[{GB}:{GB+3}], v6
ds_read_b128 v[{GB+4}:{GB+7}], v5 offset:{48*AGGB_STRIDE}
ds_read_b128 v[{GB+8}:{GB+11}], v6 offset:64
ds_read_b128 v[{GB+12}:{GB+15}], v5 offset:{48*AGGB_STRIDE+64}
s_waitcnt lgkmcnt(2)
{M16} v[{D0}:{D0+3}], v[{WU+8}:{WU+11}], v[{GB}:{GB+3}], v[{D0}:{D0+3}]
{M16} v[{D0+4}:{D0+7}], v[{WU+8}:{WU+11}], v[{GB+4}:{GB+7}], v[{D0+4}:{D0+7}]
s_waitcnt lgkmcnt(0)
{M16} v[{D0}:{D0+3}], v[{WU+12}:{WU+15}], v[{GB+8}:{GB+11}], v[{D0}:{D0+3}]
{M16} v[{D0+4}:{D0+7}], v[{WU+12}:{WU+15}], v[{GB+12}:{GB+15}], v[{D0+4}:{D0+7}]
s_nop 7
""")
    for i in range(4): a(f"v_cvt_pk_bf16_f32 v{D1+i}, v{D0+2*i}, v{D0+2*i+1}")
    for i in range(4): a(f"v_lshlrev_b32 v{D0+2*i}, 16, v{D1+i}\nv_and_b32 v{D0+2*i+1}, s3, v{D1+i}")
    for i in range(8): a(f"v_mul_f32 v{D0+8+i}, s70, v{D0+i}")
    for i in range(8): a(f"v_exp_f32 v{D0+8+i}, v{D0+8+i}")
    for i in range(8): a(f"v_add_f32 v{D0+8+i}, 1.0, v{D0+8+i}")
    for i in range(8): a(f"v_rcp_f32 v{D0+8+i}, v{D0+8+i}")
    for i in range(8): a(f"v_mul_f32 v{D0+8+i}, v{D0+i}, v{D0+8+i}")
    for i in range(4): a(f"v_cvt_pk_bf16_f32 v{D1+i}, v{D0+8+2*i}, v{D0+9+2*i}")
    a(f"""
buffer_store_dwordx2 v[{D1}:{D1+1}], v7, s[28:31], s68 offen
s_cmp_ge_u32 s13, 4
s_cbranch_scc1 K2_NOST
buffer_store_dwordx2 v[{D1+2}:{D1+3}], v7, s[28:31], s69 offen
K2_NOST:""")
    if DBG:
        a("s_waitcnt vmcnt(0)"); stamp(9,True)
        a("s_mov_b32 s26, 0x10000000\ns_lshl_b32 s3, s2, 4\ns_add_u32 s3, s3, s13\ns_lshl_b32 s3, s3, 7\ns_add_u32 s3, s3, 0x800000\nv_mov_b32 v2, 0")
        for i in range(6):
            for j in range(4): a(f"v_mov_b32 v{4+j}, s{72+4*i+j}")
            a(f"buffer_store_dwordx4 v[4:7], v2, s[24:27], s3 offen offset:{16*i}\ns_nop 1")
    if opt.get('leak'): a(leak(72,2048).replace("buffer_atomic_umin","buffer_store_dword").replace("buffer_atomic_umax","buffer_store_dword"))
    a("K2_END:")
    return a.txt(), 168

def kd(name, nv):
    return f""".amdhsa_kernel {name}
  .amdhsa_next_free_vgpr {nv}
  .amdhsa_next_free_sgpr 102
  .amdhsa_accum_offset {(nv+3)//4*4}
  .amdhsa_group_segment_fixed_size 0
  .amdhsa_kernarg_size 72
  .amdhsa_user_sgpr_count 2
  .amdhsa_user_sgpr_kernarg_segment_ptr 1
  .amdhsa_system_sgpr_workgroup_id_x 1
  .amdhsa_float_denorm_mode_32 3
.end_amdhsa_kernel
"""
def build(opt):
    b1,n1=k1(opt); b2,n2=k2(opt)
    lk=opt.get('leak','00')
    def red(arr, dst):
        op="min" if arr in (0,2) else "max"
        t=f"buffer_load_dwordx4 v[4:7], v1, s[8:11], s3 offen offset:{arr*1024}\ns_waitcnt vmcnt(0)\n"
        t+=f"v_{op}_u32 v4, v4, v5\nv_{op}_u32 v6, v6, v7\nv_{op}_u32 v4, v4, v6\n"
        for sh in (1,2,4,8): t+=f"s_nop 1\nv_{op}_u32_dpp v4, v4, v4 row_shr:{sh} row_mask:0xf bank_mask:0xf\n"
        t+=f"s_nop 1\nv_{op}_u32_dpp v4, v4, v4 row_bcast:15 row_mask:0xa bank_mask:0xf\ns_nop 1\nv_{op}_u32_dpp v4, v4, v4 row_bcast:31 row_mask:0xc bank_mask:0xf\n"
        t+=f"s_nop 1\nv_readlane_b32 s{dst}, v4, 63\n"
        return t
    K3=""".globl mpnn_leak_kernel
.p2align 8
.type mpnn_leak_kernel,@function
mpnn_leak_kernel:
s_cmp_lg_u32 s2, 0
s_cbranch_scc1 K3_END
s_memrealtime s[20:21]
s_load_dwordx2 s[4:5], s[0:1], 64
v_min_u32 v1, 61, v0
v_lshlrev_b32 v1, 4, v1
s_mov_b32 s3, 0x900000
s_waitcnt lgkmcnt(0)
s_mov_b32 s8, s4
s_and_b32 s9, s5, 0xffff
s_mov_b32 s10, 0x10000000
s_mov_b32 s11, 0x20000
"""
    if lk!='none' and opt.get('leak'):
        K3+=red(int(lk[0]),12)
        K3+=(red(int(lk[1]),13) if lk[1]!='4' else "s_mov_b32 s13, s20\n")
        K3+="""s_nop 3
s_sub_u32 s14, s13, s12
s_min_u32 s14, s14, 10000
s_lshl_b32 s14, s14, 2
"""
    else:
        K3+=red(0,12)+red(1,13)+"s_mov_b32 s14, 0\n"
    K3+="""s_memrealtime s[16:17]
s_waitcnt lgkmcnt(0)
K3_L:
s_memrealtime s[18:19]
s_waitcnt lgkmcnt(0)
s_sub_u32 s15, s18, s16
s_cmp_lt_u32 s15, s14
s_cbranch_scc1 K3_L
K3_END:
s_endpgm
"""
    s=f"""; MPNN edge-MLP: K1 partitions edges by destination bucket (and re-lays-out weights), K2 does everything else.
; @launch kernel=mpnn_part_kernel grid=({K1_GRID},1,1) block=({K1_BLOCK},1,1) lds={K1_LDS}
; @launch kernel=mpnn_main_kernel grid=(256,1,1) block=({NW*64},1,1) lds={K2_LDS}
{"; @launch kernel=mpnn_leak_kernel grid=(1,1,1) block=(64,1,1) lds=0"+chr(10) if opt.get('leak') else ""}.amdgcn_target "amdgcn-amd-amdhsa--gfx950"
.text
.globl mpnn_part_kernel
.p2align 8
.type mpnn_part_kernel,@function
mpnn_part_kernel:
{b1}    s_endpgm
.globl mpnn_main_kernel
.p2align 8
.type mpnn_main_kernel,@function
mpnn_main_kernel:
{b2}    s_endpgm
MPNN_CODE_END:
{K3 if opt.get('leak') else ""}.section .rodata,"a"
{(".p2align 6"+chr(10)+kd('mpnn_leak_kernel',16)) if opt.get('leak') else ""}.p2align 6
{kd('mpnn_part_kernel',n1)}.p2align 6
{kd('mpnn_main_kernel',n2)}"""
    return s
if __name__=="__main__":
    out=sys.argv[1] if len(sys.argv)>1 else "standalone__mpnn_edge_mlp__graph.s"
    opt=dict(kv.split("=",1) for kv in sys.argv[2:])
    open(out,"w").write(build(opt))
    print("SWZ",SWZ,"K2_LDS",K2_LDS)
```
